```python
import torch

def _softmax(x, axis=-1):
    return torch.softmax(x, dim=axis)
def _gelu(x):
    return torch.nn.functional.gelu(x, approximate="tanh")
def _silu(x):
    return torch.nn.functional.silu(x)
def _sigmoid(x):
    return torch.sigmoid(x)
def _layernorm(x, axis=-1, eps=1e-5):
    m = x.mean(dim=axis, keepdim=True)
    v = x.var(dim=axis, keepdim=True, unbiased=False)
    return (x - m) / torch.sqrt(v + eps)
def _scatter_add(tgt, idx, src, axis=0):
    return tgt.clone().index_add_(axis, idx, src)
def _segment_sum(src, seg, n):
    out = torch.zeros((n,) + src.shape[1:], dtype=src.dtype)
    return out.index_add_(0, seg, src)
def _pad(x, pw):
    flat = tuple(v for pair in reversed(pw) for v in pair)
    return torch.nn.functional.pad(x, flat)

kernel_name = 'recurrent_scan__ssm_conv_s4__dense_activation_gelu__prompt'

def setup_inputs():

    _w = (lambda a: (lambda t: t.to(torch.bfloat16) if t.is_floating_point() else t)(torch.as_tensor(a)))
    def _A_setup():
        B, L, D, N = 1, 2048, 640, 128
        A_re = -(lambda _x: torch.exp(torch.as_tensor(_x)))((lambda *s: torch.randn(*s, dtype=torch.bfloat16) * 6.4)(D, N))
        A_im = torch.pi * (lambda *s: torch.randn(*s, dtype=torch.bfloat16) * 0.2)(D, N)
        B_re = (lambda *s: torch.randn(*s, dtype=torch.bfloat16) * 0.2)(D, N)
        B_im = (lambda *s: torch.randn(*s, dtype=torch.bfloat16) * 0.2)(D, N)
        C_re = (lambda *s: torch.randn(*s, dtype=torch.bfloat16) * 0.2)(D, N)
        C_im = (lambda *s: torch.randn(*s, dtype=torch.bfloat16) * 0.2)(D, N)
        log_dt = (lambda *s: torch.randn(*s, dtype=torch.bfloat16) * 0.2)(D) * 0.5 - 4.0
        Dskip = (lambda *s: torch.randn(*s, dtype=torch.bfloat16) * 0.2)(D)
        return {
            "u": _w((lambda *s: torch.randn(*s, dtype=torch.bfloat16) * 0.05)(B, L, D)),
            "A_re": _w(A_re),
            "A_im": _w(A_im),
            "B_re": _w(B_re),
            "B_im": _w(B_im),
            "C_re": _w(C_re),
            "C_im": _w(C_im),
            "log_dt": _w(log_dt),
            "Dskip": _w(Dskip),
        }
    _A_in = _A_setup()

    def _B_setup():
        B, S, D, F = 1, 2048, 640, 1728
        return {
            "x": _w((lambda *s: torch.randn(*s, dtype=torch.bfloat16) * 0.05)(B, S, D)),
            "w1": _w((lambda *s: torch.randn(*s, dtype=torch.bfloat16) * 0.8)(D, F) * (D ** -0.5)),
            "b1": _w((lambda *s: torch.randn(*s, dtype=torch.bfloat16) * 0.1)(F) * 0.01),
            "w2": _w((lambda *s: torch.randn(*s, dtype=torch.bfloat16) * 0.1)(F, D) * (F ** -0.5)),
            "b2": _w((lambda *s: torch.randn(*s, dtype=torch.bfloat16) * 0.1)(D) * 0.01),
        }
    _B_in = _B_setup()

    return {
        "A_u": _A_in["u"],
        "A_A_re": _A_in["A_re"],
        "A_A_im": _A_in["A_im"],
        "A_B_re": _A_in["B_re"],
        "A_B_im": _A_in["B_im"],
        "A_C_re": _A_in["C_re"],
        "A_C_im": _A_in["C_im"],
        "A_log_dt": _A_in["log_dt"],
        "A_Dskip": _A_in["Dskip"],
        "B_x": _B_in["x"],
        "B_w1": _B_in["w1"],
        "B_b1": _B_in["b1"],
        "B_w2": _B_in["w2"],
        "B_b2": _B_in["b2"],
    }

def reference(A_u, A_A_re, A_A_im, A_B_re, A_B_im, A_C_re, A_C_im, A_log_dt, A_Dskip, B_x, B_w1, B_b1, B_w2, B_b2):
    def _A_ref(u, A_re, A_im, B_re, B_im, C_re, C_im, log_dt, Dskip):
        Bsz, L, D = u.shape
        dt = torch.exp(log_dt)[:, None]
        A = A_re + 1j * A_im
        Bc = B_re + 1j * B_im
        Cc = C_re + 1j * C_im
        logdA = dt * A
        dB = dt * Bc
        l = (lambda x, dt: x.to(dt))(torch.arange(L), A_re.dtype)
        P = torch.exp(logdA[:, :, None] * l[None, None, :])
        K = torch.einsum("dn,dnl,dn->dl", Cc, P, dB).real
        L2 = 2 * L
        Kp = _pad(K, ((0, 0), (0, L)))
        up = (lambda x, *d: x.permute(*d))(u, 0, 2, 1)
        up = _pad(up, ((0, 0), (0, 0), (0, L)))
        Kf = (lambda x, axes=(-2,-1): torch.fft.rfft2(x.float(), dim=axes))(Kp[:, None, :], axes=(-2, -1))
        Uf = (lambda x, axes=(-2,-1): torch.fft.rfft2(x.float(), dim=axes))(up[:, :, None, :], axes=(-2, -1))
        Yf = Uf * Kf[None, :, :, :]
        y = (lambda x, s, axes=(-2,-1): torch.fft.irfft2(x, s=s, dim=axes).to(torch.bfloat16))(Yf, (1, L2), axes=(-2, -1))[:, :, 0, :L]
        y = (lambda x, *d: x.permute(*d))(y, 0, 2, 1) + u * Dskip[None, None, :]
        return y

    def _B_ref(x, w1, b1, w2, b2):
        h = torch.einsum("bsd,df->bsf", x, w1) + b1
        h = _gelu(h)
        return torch.einsum("bsf,fd->bsd", h, w2) + b2

    x = A_u
    xn = _layernorm(x, axis=-1)
    s = _A_ref(xn, A_A_re, A_A_im, A_B_re, A_B_im, A_C_re, A_C_im, A_log_dt, A_Dskip)
    g = _silu(_B_ref(xn, B_w1, B_b1, B_w2, B_b2))
    return x + s * g
```

```python
import re, sys
N='recurrent_scan__ssm_conv_s4__dense_activation_gelu__prompt'
s = open(sys.argv[1]).read()
ticks = int(sys.argv[3])
which = sys.argv[4] if len(sys.argv) > 4 else 's4p1_kernel'
code = """.text
.globl diag_kernel
.p2align 8
.type diag_kernel,@function
diag_kernel:
    s_cmp_lg_u32 s2, 0
    s_cbranch_scc1 L_diag_end
    s_load_dwordx2 s[4:5], s[0:1], 128
    s_waitcnt lgkmcnt(0)
    s_add_u32 s4, s4, 0x1000000
    s_addc_u32 s5, s5, 0
    s_load_dword s6, s[4:5], 0
    s_waitcnt lgkmcnt(0)
    s_mov_b32 s10, 0
L_diag_spin:
    s_memrealtime s[8:9]
    s_waitcnt lgkmcnt(0)
    s_add_u32 s10, s10, 1
    s_cmp_ge_u32 s10, 100000
    s_cbranch_scc1 L_diag_end
    s_sub_u32 s8, s8, s6
    s_cmp_lt_u32 s8, %d
    s_cbranch_scc1 L_diag_spin
L_diag_end:
    s_endpgm
""" % ticks
kd = """.p2align 6
.amdhsa_kernel diag_kernel
  .amdhsa_next_free_vgpr 8
  .amdhsa_next_free_sgpr 16
  .amdhsa_accum_offset 8
  .amdhsa_group_segment_fixed_size 0
  .amdhsa_kernarg_size 136
  .amdhsa_user_sgpr_count 2
  .amdhsa_user_sgpr_kernarg_segment_ptr 1
  .amdhsa_system_sgpr_workgroup_id_x 1
.end_amdhsa_kernel
"""
nl = '; @launch kernel=diag_kernel grid=(1,1,1) block=(64,1,1) lds=0\n'
ls = re.findall(r'; @launch kernel=.*\n', s)
s = s.replace(ls[-1], ls[-1] + nl)
pre = """%s:
    s_memrealtime s[92:93]
    s_cmp_lg_u32 s2, 0
    s_cbranch_scc1 L_diag_skip
    s_load_dwordx2 s[94:95], s[0:1], 128
    s_waitcnt lgkmcnt(0)
    v_mov_b32 v3, s92
    v_mov_b32 v4, 0x1000000
    v_cmp_eq_u32 vcc, 0, v0
    s_and_saveexec_b64 s[90:91], vcc
    s_cbranch_execz L_diag_rest
    global_store_dword v4, v3, s[94:95]
L_diag_rest:
    s_mov_b64 exec, s[90:91]
L_diag_skip:
""" % which
if which != 'none': s = s.replace(which + ':\n', pre)
s = s.replace('.section .rodata,"a"\n', code + '.section .rodata,"a"\n') + kd
open(sys.argv[2], 'w').write(s)
```

```python
import re

TRANS = ('v_exp_f32', 'v_log_f32', 'v_rcp_f32', 'v_rsq_f32', 'v_sqrt_f32', 'v_sin_f32', 'v_cos_f32')
REG = re.compile(r'\b([vsa])(\d+)\b|\b([vsa])\[(\d+):(\d+)\]|\b(vcc|exec|m0|scc)\b')

def regs_of(tok):
    out = set()
    for m in REG.finditer(tok):
        if m.group(1): out.add((m.group(1), int(m.group(2))))
        elif m.group(3):
            for i in range(int(m.group(4)), int(m.group(5)) + 1): out.add((m.group(3), i))
        else: out.add((m.group(6), 0))
    return out

def split_ops(s):
    ops, depth, cur = [], 0, ''
    for ch in s:
        if ch in '[(': depth += 1
        if ch in '])': depth -= 1
        if ch == ',' and depth == 0:
            ops.append(cur.strip()); cur = ''
        else: cur += ch
    if cur.strip(): ops.append(cur.strip())
    return ops

class Ins:
    def __init__(self, text):
        self.text = text
        t = text.split(';')[0].strip()
        self.label = t.endswith(':')
        self.directive = t.startswith('.')
        self.empty = (t == '')
        if self.label or self.directive or self.empty:
            self.op = ''; self.kind = 'none'; self.dst = set(); self.src = set(); return
        p = t.split(None, 1)
        self.op = p[0]
        rest = p[1] if len(p) > 1 else ''
        ops = split_ops(rest)
        op = self.op
        self.mods = rest
        dst, src = set(), set()
        k = 'other'
        if op.startswith('v_mfma'):
            k = 'mfma'
            dst = regs_of(ops[0]); self.a = regs_of(ops[1]) | regs_of(ops[2]); self.c = regs_of(ops[3].split()[0])
            src = self.a | self.c
            self.passes = 8 if '32x32' in op else 4
        elif op.startswith('v_cmp'):
            k = 'valu'; dst = regs_of(ops[0])
            for o in ops[1:]: src |= regs_of(o)
            if op.startswith('v_cmpx'): dst |= {('exec', 0)}
        elif op.startswith('v_readfirstlane') or op.startswith('v_readlane'):
            k = 'valu'; dst = regs_of(ops[0])
            for o in ops[1:]: src |= regs_of(o)
        elif op.startswith('v_'):
            k = 'valu'; dst = regs_of(ops[0])
            start = 1
            if '_co_' in op: dst |= regs_of(ops[1]); start = 2
            for o in ops[start:]: src |= regs_of(o.split(' op_sel')[0].split(' neg_')[0])
            if op.startswith(('v_fmac', 'v_dot2c', 'v_permlane', 'v_writelane')) or 'dpp' in op or 'row_' in rest or 'quad_perm' in rest or 'wave_' in rest: src |= dst
            if op.startswith('v_permlane') and 'swap' in op: dst |= regs_of(ops[1])
            if op.startswith('v_cndmask') and len(ops) == 3: src.add(('vcc', 0))
        elif op.startswith(('buffer_', 'global_')):
            k = 'vmem'
            lds = bool(re.search(r'\blds\b', rest)) or 'load_lds' in op
            self.lds = lds
            if 'load' in op and not lds:
                dst = regs_of(ops[0])
                for o in ops[1:]: src |= regs_of(o)
                if 'd16' in op: src |= dst
            else:
                for o in ops: src |= regs_of(o)
                if lds: src.add(('m0', 0))
                if 'atomic' in op and 'sc0' in rest: dst = regs_of(ops[0])
            self.widestore = ('store' in op and ('x3' in op or 'x4' in op))
            if self.widestore:
                self.data = regs_of(ops[0]) if op.startswith('buffer_') else regs_of(ops[1])
        elif op.startswith('ds_'):
            k = 'ds'
            if 'read' in op or 'permute' in op or 'swizzle' in op or '_rtn' in op:
                dst = regs_of(ops[0])
                for o in ops[1:]: src |= regs_of(o)
                if 'd16' in op: src |= dst
            else:
                for o in ops: src |= regs_of(o)
        elif op.startswith('s_'):
            k = 'salu'
            if op in ('s_nop', 's_waitcnt', 's_barrier', 's_endpgm', 's_setprio', 's_sleep', 's_branch') or op.startswith('s_cbranch'):
                pass
            elif op.startswith('s_cmp'):
                for o in ops: src |= regs_of(o)
            else:
                dst = regs_of(ops[0]) if ops else set()
                for o in ops[1:]: src |= regs_of(o)
        self.kind = k; self.dst = dst; self.src = src
        self.trans = op.replace('_e32', '').replace('_e64', '') in TRANS
        self.dpp = k == 'valu' and ('dpp' in op or 'row_' in rest or 'quad_perm' in rest or 'wave_' in rest)
    def states(self):
        if self.kind == 'none': return 0
        if self.op == 's_nop': return int(self.mods.strip(), 0) + 1
        return 1

def vg(s): return {r for r in s if r[0] in 'va' and len(r[0]) == 1}
def sg(s): return {r for r in s if r[0] == 's' or r[0] == 'vcc'}

def need(p, c):
    n = 0
    if p.kind == 'valu':
        pv = vg(p.dst)
        if c.kind == 'mfma' and pv & c.src: n = max(n, 2)
        if c.kind == 'mfma' and ('exec', 0) in p.dst: n = max(n, 4)
        if c.kind == 'valu':
            if p.trans and not c.trans and pv & c.src: n = max(n, 1)
            if c.op.startswith(('v_readfirstlane', 'v_readlane')) and pv & c.src: n = max(n, 1)
            if c.dpp and pv & c.src: n = max(n, 2)
            if c.op.startswith('v_permlane') and pv & c.src: n = max(n, 2)
            if sg(p.dst) & sg(c.src): n = max(n, 4 if c.op.startswith(('v_readlane', 'v_writelane')) else 2)
            if ('exec', 0) in p.dst and (c.dpp): n = max(n, 5)
            if ('exec', 0) in p.dst and c.op.startswith(('v_readfirstlane', 'v_readlane', 'v_permlane')): n = max(n, 4)
            if ('op_sel' in p.mods and not p.op.startswith('v_pk_') or 'sdwa' in p.op or 'dst_sel' in p.mods) and pv & (c.src | c.dst): n = max(n, 1)
        if p.trans and c.kind in ('vmem', 'ds') and pv & c.src: n = max(n, 1)
        if p.op.startswith('v_dot') and c.kind in ('valu', 'vmem', 'ds', 'mfma') and pv & (c.src | c.dst):
            same = c.op == p.op
            if same:
                ops = split_ops(c.mods)
                ab = regs_of(ops[1]) | regs_of(ops[2])
                if pv & ab: n = max(n, 3)
            else: n = max(n, 3)
        if c.kind == 'vmem' and sg(p.dst) & sg(c.src): n = max(n, 5)
        if c.kind == 'salu' and sg(p.dst) & sg(c.src): n = max(n, 1)
    if p.kind == 'mfma':
        d = p.dst
        big = 12 if p.passes == 8 else 8
        if c.kind == 'mfma':
            if d & c.a: n = max(n, big)
            if d & c.c and (c.c != d or c.passes != p.passes): n = max(n, big - 2)
            if d & c.dst and not (d & c.c): n = max(n, big)
        elif c.kind in ('valu', 'vmem', 'ds'):
            if d & (c.src | c.dst): n = max(n, big)
        if c.kind == 'valu' and p.c & c.dst: n = max(n, 7 if p.passes == 8 else 3)
    if p.kind == 'salu' and ('m0', 0) in p.dst and c.kind == 'vmem' and getattr(c, 'lds', False): n = max(n, 1)
    if p.kind == 'vmem' and getattr(p, 'widestore', False) and p.data & c.dst: n = max(n, 2)
    return n

def insert_waits(lines, window=16):
    out = []
    for text in lines:
        c = Ins(text)
        if c.kind != 'none':
            dist = 0; req = 0
            for p in reversed(out[-64:]):
                if p.kind == 'none': continue
                r = need(p, c) - dist
                if r > req: req = r
                dist += p.states()
                if dist >= window: break
            while req > 0:
                k = min(req, 16)
                out.append(Ins('s_nop %d' % (k - 1)))
                req -= k
        out.append(c)
    return [i.text for i in out]

class Asm:
    def __init__(self): self.l = []
    def __call__(self, s):
        for line in s.split('\n'):
            line = line.strip()
            if line: self.l.append(line)
    def srd(self, d, base, nbytes):
        self('s_mov_b32 s%d, s%d' % (d, base))
        self('s_and_b32 s%d, s%d, 0xffff' % (d + 1, base + 1))
        self('s_mov_b32 s%d, %d' % (d + 2, nbytes))
        self('s_mov_b32 s%d, 0x20000' % (d + 3))

def V(a, n=1): return 'v%d' % a if n == 1 else 'v[%d:%d]' % (a, a + n - 1)
def S(a, n=1): return 's%d' % a if n == 1 else 's[%d:%d]' % (a, a + n - 1)

def kernel_text(name, lines, vgpr, sgpr=96):
    body = insert_waits(lines)
    t = ['.text', '.globl %s' % name, '.p2align 8', '.type %s,@function' % name, '%s:' % name]
    for b in body:
        t.append(b if b.endswith(':') else '    ' + b)
    return '\n'.join(t) + '\n'

def kd_text(name, vgpr, sgpr=96):
    acc = (vgpr + 3) // 4 * 4
    return ('.p2align 6\n.amdhsa_kernel %s\n  .amdhsa_next_free_vgpr %d\n  .amdhsa_next_free_sgpr %d\n  .amdhsa_accum_offset %d\n'
            '  .amdhsa_group_segment_fixed_size 0\n  .amdhsa_kernarg_size 136\n  .amdhsa_user_sgpr_count 2\n'
            '  .amdhsa_user_sgpr_kernarg_segment_ptr 1\n  .amdhsa_system_sgpr_workgroup_id_x 1\n.end_amdhsa_kernel\n') % (name, vgpr, sgpr, min(acc, 256))
```

```python
import sys, math, struct
from asmlib import *

NAME = 'recurrent_scan__ssm_conv_s4__dense_activation_gelu__prompt'
XNT = 0
SOFF = 0x280000
HOFF = 0x500000
W2N = 0xBC0000
STAT = 0xDDC000
CS = 0xDE0000
CSG = 14336
FST = 0xDE8000
FCS = FST + 128
FXN = FST + 512
FW = FST + 1280
FH = FST + 2560
FS = FST + 8192
WS_USED = FST + 8192 + 8 * 2560
STAMP = 0xF00000
SPIN_MAX = 100000
CP = 4160
CFRONT = 16
RSZ = 4 * CP
XSZ = 4608
XR0 = 81920
NS = 4
REG0 = XR0 + 3 * XSZ
KG_PITCH = 544
KG_BUF = 16 * KG_PITCH
KS0 = NS * 32768
SYNC = 163584
LDS_TOT = SYNC + 256
Y_LPROG, Y_GPROG, Y_NONCE, Y_REC, Y_XN, Y_WL, Y_CV, Y_LN, Y_ST, Y_KD, Y_WOK = 0, 16, 32, 36, 40, 44, 48, 64, 96, 112, 60
REC = 65536
STILE = REG0 + 3 * RSZ
LN_PART = 81920
LN_PST = LN_PART + 2560
assert KS0 + 2 * KG_BUF + 10240 <= SYNC and STILE + 10400 <= SYNC
assert LDS_TOT <= 163840

def fbits(x): return '0x%08x' % struct.unpack('<I', struct.pack('<f', x))[0]
LOG2E = 1.4426950408889634
L2E_HI = struct.unpack('<f', struct.pack('<f', LOG2E))[0]
L2E_LO = LOG2E - L2E_HI

class Cfg:
    stamp = 0
    dwg = -1; dwave = 0; di = 0
    rot = 0
    mapP = 0
    wl = 1
    wg_in_gelu = 2
    gprio = 2
    gate = 1
    acq = 0
    nok = 0
    wgate = 10
    lsleep = 1
    ksleep = 4
    wsleep = 6
    hsleep = 3
    gdbg = 0
    gsleep = 0
    tprio = 3
    uearly = 1
    kgate = 11
    sgate = 8
    lslow = 1
    kmprio = 3
    ldbg = 0
    kprio = 0
    lprio = 3

UID = [0]
def uid():
    UID[0] += 1
    return UID[0]

def stamp(A, c, i):
    if c.dwg >= 0 and i == c.di:
        n = uid()
        A('s_cmp_lg_u32 s2, %d' % c.dwg)
        A('s_cbranch_scc1 L_dg%d' % n)
        A('s_cmp_lg_u32 s3, %d' % c.dwave)
        A('s_cbranch_scc1 L_dg%d' % n)
        A('s_memrealtime s[90:91]')
        A('s_waitcnt lgkmcnt(0)')
        A('v_mov_b32 v2, s90')
        A('v_mov_b32 v3, 0x1000000')
        A('global_store_dword v3, v2, s[36:37]')
        A('L_dg%d:' % n)
    if c.stamp:
        A('%s s[%d:%d]' % ('s_memtime' if c.stamp == 2 else 's_memrealtime', 78 + 2 * i, 79 + 2 * i))

def endpgm(A, c):
    if c.dwg >= 0 and c.di == 11:
        A('s_waitcnt vmcnt(0)')
        stamp(A, c, 11)
    if c.stamp:
        A('s_waitcnt vmcnt(0)')
        stamp(A, c, 11)
        A('s_waitcnt lgkmcnt(0)')
        A('s_mov_b64 exec, -1')
        for i in range(12): A('v_mov_b32 v%d, s%d' % (8 + i, 78 + 2 * i))
        A('s_lshl_b32 s76, s2, 3')
        A('s_add_u32 s76, s76, s3')
        A('s_lshl_b32 s76, s76, 6')
        A('s_add_u32 s76, s76, %d' % STAMP)
        A('v_mov_b32 v7, 0')
        A('s_mov_b32 s42, 0x1000000')
        for k in range(3): A('buffer_store_dwordx4 %s, v7, s[40:43], s76 offen offset:%d' % (V(8 + 4 * k, 4), 16 * k))
    A('s_endpgm')

def lds_set(A, word, val, va, vb):
    if isinstance(word, int): A('v_mov_b32 v%d, %d' % (va, SYNC + word))
    else: A('v_mov_b32 v%d, %s' % (va, word))
    A('v_mov_b32 v%d, %s' % (vb, val))
    A('s_mov_b64 exec, 1')
    A('ds_write_b32 v%d, v%d' % (va, vb))
    A('s_mov_b64 exec, -1')

def lds_wait(A, vaddr, vt, cmp, val, sleep=1):
    n = uid()
    A('s_mov_b32 s77, 0')
    A('L_lw%d:' % n)
    A('ds_read_b32 v%d, v%d' % (vt, vaddr))
    A('s_waitcnt lgkmcnt(0)')
    A('v_cmp_%s_u32 vcc, %s, v%d' % (cmp, val, vt))
    A('s_cmp_eq_u64 vcc, -1')
    A('s_cbranch_scc1 L_lx%d' % n)
    A('s_add_u32 s77, s77, 1')
    A('s_cmp_ge_u32 s77, %d' % (SPIN_MAX * 8))
    A('s_cbranch_scc1 L_lx%d' % n)
    if sleep: A('s_sleep %d' % sleep)
    A('s_branch L_lw%d' % n)
    A('L_lx%d:' % n)

def get_nonce(A, va, vt):
    A('v_mov_b32 v%d, %d' % (va, SYNC + Y_NONCE))
    lds_wait(A, va, vt, 'ne', '0')
    A('v_readfirstlane_b32 s59, v%d' % vt)

def gpoll(A, voff, vt, soff, sleep):
    n = uid()
    A('s_mov_b32 s77, 0')
    A('L_gp%d:' % n)
    A('buffer_load_dword v%d, v%d, s[40:43], %s offen sc1' % (vt, voff, soff))
    A('s_waitcnt vmcnt(0)')
    A('v_cmp_eq_u32 vcc, s59, v%d' % vt)
    A('s_cmp_eq_u64 vcc, -1')
    A('s_cbranch_scc1 L_gx%d' % n)
    A('s_add_u32 s77, s77, 1')
    A('s_cmp_ge_u32 s77, %d' % SPIN_MAX)
    A('s_cbranch_scc1 L_gx%d' % n)
    A('s_sleep %d' % sleep)
    A('s_branch L_gp%d' % n)
    A('L_gx%d:' % n)

def gflag(A, soff, va, vb):
    A('v_mov_b32 v%d, 0' % va)
    A('v_mov_b32 v%d, s59' % vb)
    A('s_mov_b64 exec, 1')
    A('buffer_store_dword v%d, v%d, s[40:43], %s offen sc1' % (vb, va, soff))
    A('s_mov_b64 exec, -1')

def loader(A, c):
    A('s_setprio %d' % c.lprio)
    A.srd(44, 4, 2048 * 1280)
    A.srd(48, 24, 640 * 3456)
    A('s_mul_i32 s62, s60, %d' % (128 * 1280))
    A('s_lshl_b32 s63, s61, 8')
    if c.rot:
        A('s_and_b32 s64, s60, 3')
        A('s_mul_i32 s64, s64, 3')
        A('s_add_u32 s64, s64, s61')
        A('s_mul_i32 s65, s64, 26')
        A('s_lshr_b32 s65, s65, 8')
        A('s_mul_i32 s65, s65, 10')
        A('s_sub_u32 s68, s64, s65')
    else:
        A('s_mov_b32 s68, 0')
    slow = Asm()
    def dbg(st, i):
        if c.ldbg:
            A('s_memtime s[64:65]')
            A('s_waitcnt lgkmcnt(0)')
            A('v_writelane_b32 v61, s64, %d' % (4 * st + i))
    def signal(X, n):
        X('s_mov_b64 exec, 1')
        X('ds_write_b32 v21, v22')
        X('s_mov_b64 exec, -1')
    for st in range(10):
        slot = (st % NS) * 32768
        if st >= NS:
            A('s_waitcnt lgkmcnt(1)')
            A('v_cmp_le_u32 vcc, %d, v23' % (st - NS + 1))
            A('s_cmp_eq_u64 vcc, -1')
            A('s_cbranch_scc0 L_ld_slow%d' % st)
            A('L_ld_back%d:' % st)
            slow('L_ld_slow%d:' % st)
            if c.lslow:
                slow('v_mov_b32 v22, %d' % st)
                slow('s_waitcnt vmcnt(0)')
                signal(slow, st)
            lds_wait(slow, 20, 23, 'le', str(st - NS + 1), sleep=c.lsleep)
            slow('s_branch L_ld_back%d' % st)
        dbg(st, 0)
        if c.rot:
            A('s_lshl_b32 s69, s68, 7')
            A('s_add_u32 s69, s69, s62')
            A('s_mul_i32 s70, s68, %d' % (64 * 3456))
            A('s_add_u32 s70, s70, s63')
        for g in range(4):
            if not c.rot: A('s_add_u32 s69, s62, %d' % (st * 128 + g * 32 * 1280))
            A('s_mov_b32 m0, %d' % (slot + g * 4096))
            for i in range(4): A('buffer_load_dwordx4 v%d, s[44:47], s69 offen offset:%d lds' % (4 + i, 1024 * i))
            if not c.rot: A('s_add_u32 s70, s63, %d' % ((st * 64 + g * 16) * 3456))
            A('s_mov_b32 m0, %d' % (slot + 16384 + g * 4096))
            for i in range(4): A('buffer_load_dwordx4 v%d, s[48:51], s70 offen offset:%d lds' % (14 + i, 1024 * i))
            if c.rot and g < 3:
                A('s_add_u32 s69, s69, %d' % (32 * 1280))
                A('s_add_u32 s70, s70, %d' % (16 * 3456))
            if st == 0 and g == 3:
                A('v_and_b32 v20, 3, v1')
                A('v_lshlrev_b32 v20, 2, v20')
                A('v_add_u32 v20, %d, v20' % (SYNC + Y_GPROG))
                A('v_mov_b32 v21, %d' % (SYNC + Y_LPROG))
            if st == 1 and g == 1: records_addr(A, c)
            if g == 2 and NS - 1 <= st < 9: A('ds_read_b32 v23, v20')
            if c.rot and g == 0:
                A('s_add_u32 s68, s68, 1')
                A('s_cmp_eq_u32 s68, 10')
                A('s_cselect_b32 s68, 0, s68')
        dbg(st, 1)
        if st == 9:
            b1_load(A)
            records_batch(A, c)
        if st >= 1:
            A('v_mov_b32 v22, %d' % st)
            A('s_waitcnt vmcnt(%d)' % (38 if st == 9 else 32))
            signal(A, st)
        dbg(st, 2)
    A('v_mov_b32 v22, 10')
    A('s_waitcnt vmcnt(6)')
    signal(A, 10)
    c.ld_slow = slow.l
    stamp(A, c, 1)
    if c.ldbg:
        A('s_lshl_b32 s64, s2, 8')
        A('s_add_u32 s64, s64, %d' % (STAMP + 0x40000))
        A('v_lshl_add_u32 v60, v1, 2, s64')
        A('global_store_dword v60, v61, s[36:37]')
    A('L_ld_rec:')
    records_finish(A, c)
    stamp(A, c, 3)

def loader_wl(A, c):
    A('v_and_b32 v20, 3, v1')
    A('v_lshlrev_b32 v20, 2, v20')
    A('v_add_u32 v20, %d, v20' % (SYNC + Y_GPROG))
    lds_wait(A, 20, 23, 'le', '11', sleep=1)
    lds_set(A, Y_KD + 12, 1, 21, 22)
    A('s_cmp_eq_u32 s74, 1')
    A('s_cbranch_scc1 L_wl_xn')
    gpoll(A, 33, 37, 's72', 8)
    x_loads(A, c)
    A('L_wl_xn:')
    A('s_waitcnt vmcnt(0)')
    lds_set(A, Y_XN, 1, 21, 22)

WREG = 136
SC = ['']
def w_load(step, db, soff):
    r = WREG + 20 * (step % 6) + 4 * db
    if db < 4: return 'buffer_load_dwordx4 %s, v2, s[40:43], %s offen offset:%d%s' % (V(r, 4), soff, db * 1024, SC[0])
    return 'buffer_load_dwordx4 %s, v3, s[40:43], %s offen%s' % (V(r, 4), soff, SC[0])

def g_common_setup(A, c):
    A('v_lshlrev_b32 v2, 4, v1')
    A('v_add_u32 v3, 4096, v2')
    A('s_mul_i32 s72, s57, 54')
    A('s_mul_i32 s73, s3, 14')
    A('s_add_u32 s72, s72, s73')
    A('s_mul_i32 s72, s72, 5120')
    A('s_add_u32 s72, s72, %d' % W2N)
    A('s_lshl_b32 s75, s3, 2')
    A('s_add_u32 s75, s75, %d' % (SYNC + Y_GPROG))

def wloads_list():
    L = []
    for st in range(6):
        L.append('s_add_u32 s74, s72, %d' % (st * 5120))
        for db in range(5): L.append(w_load(st, db, 's74'))
    return L

def gemm1(A, c):
    ACC = 4
    FR = [68, 84]
    aA = [100, 101]
    aB = [102, 103, 104, 105]
    A('s_setprio %d' % c.gprio)
    A('s_and_b32 s62, s3, 1')
    A('s_lshr_b32 s63, s3, 1')
    A('v_lshrrev_b32 v112, 4, v1')
    A('v_bfe_u32 v113, v1, 2, 2')
    A('v_and_b32 v114, 3, v1')
    A('v_lshrrev_b32 v115, 1, v112')
    A('v_lshl_add_u32 v115, v115, 3, v113')
    A('v_lshlrev_b32 v115, 8, v115')
    A('v_and_b32 v116, 1, v112')
    A('v_lshlrev_b32 v116, 1, v116')
    A('v_lshrrev_b32 v117, 1, v114')
    A('v_add_u32 v116, v116, v117')
    A('s_lshl_b32 s64, s62, 3')
    A('v_add_u32 v116, s64, v116')
    A('v_lshlrev_b32 v117, 2, v113')
    A('v_xor_b32 v116, v116, v117')
    A('v_lshl_add_u32 v115, v116, 4, v115')
    A('v_and_b32 v117, 1, v114')
    A('v_lshl_add_u32 v115, v117, 3, v115')
    A('v_add_u32 v%d, 16384, v115' % aA[0])
    A('v_xor_b32 v%d, 64, v%d' % (aA[1], aA[0]))
    A('v_and_b32 v112, 31, v1')
    A('v_lshrrev_b32 v113, 5, v1')
    A('v_bfe_u32 v114, v1, 1, 3')
    A('v_xor_b32 v114, v114, v113')
    A('s_lshl_b32 s64, s63, 6')
    A('v_add_u32 v115, s64, v112')
    A('v_lshlrev_b32 v115, 7, v115')
    A('v_lshl_add_u32 v%d, v114, 4, v115' % aB[0])
    for kk in range(1, 4): A('v_xor_b32 v%d, %d, v%d' % (aB[kk], kk * 32, aB[0]))
    A('v_lshlrev_b32 v106, 3, v112')
    A('s_lshl_b32 s64, s63, 9')
    A('s_add_u32 s64, s64, %d' % REC)
    A('v_add_u32 v106, s64, v106')
    A('v_lshlrev_b32 v107, 3, v112')
    A('v_lshl_add_u32 v107, v113, 10, v107')
    A('s_lshl_b32 s64, s62, 9')
    A('s_add_u32 s64, s64, %d' % (REC + 1024))
    A('v_add_u32 v107, s64, v107')
    A('v_lshrrev_b32 v108, 4, v112')
    A('v_lshlrev_b32 v108, 10, v108')
    A('v_and_b32 v114, 15, v1')
    A('v_lshl_add_u32 v108, v114, 4, v108')
    A('v_lshl_add_u32 v108, v113, 8, v108')
    A('v_mov_b32 v109, %d' % (SYNC + Y_LPROG))
    A('v_mov_b32 v110, s75')
    A('s_lshl_b32 s64, s60, 1')
    A('s_add_u32 s64, s64, s63')
    A('s_lshl_b32 s65, s61, 1')
    A('s_add_u32 s65, s65, s62')
    A('s_lshl_b32 s70, s64, 5')
    A('s_add_u32 s70, s70, s65')
    A('s_lshl_b32 s70, s70, 2')
    A('s_add_u32 s70, s70, %d' % FH)
    A('s_mul_i32 s64, s64, 27')
    A('s_add_u32 s64, s64, s65')
    A('s_lshl_b32 s64, s64, 13')
    A('s_add_u32 s66, s64, %d' % HOFF)
    A('s_add_u32 s67, s66, 4096')
    A('s_mov_b32 s71, s65')
    for i in range(64): A('v_mov_b32 v%d, 0' % (ACC + i))

    def reads(kk):
        f = FR[kk & 1]
        return ['ds_read_b64_tr_b16 %s, v%d offset:%d' % (V(f, 2), aA[0], kk * 4096),
                'ds_read_b64_tr_b16 %s, v%d offset:%d' % (V(f + 2, 2), aA[0], kk * 4096 + 1024),
                'ds_read_b128 %s, v%d' % (V(f + 8, 4), aB[kk]),
                'ds_read_b128 %s, v%d offset:4096' % (V(f + 12, 4), aB[kk]),
                'ds_read_b64_tr_b16 %s, v%d offset:%d' % (V(f + 4, 2), aA[1], kk * 4096),
                'ds_read_b64_tr_b16 %s, v%d offset:%d' % (V(f + 6, 2), aA[1], kk * 4096 + 1024)]
    def mf(kk, fb, tb):
        f = FR[kk & 1]
        d = V(ACC + 16 * (2 * fb + tb), 16)
        return 'v_mfma_f32_32x32x16_bf16 %s, %s, %s, %s' % (d, V(f + 4 * fb, 4), V(f + 8 + 4 * tb, 4), d)
    def kstep(kk, extra=None):
        R = reads(kk + 1)
        A('s_waitcnt lgkmcnt(3)')
        A(mf(kk, 0, 0))
        for l in R[:3]: A(l)
        A('s_waitcnt lgkmcnt(5)')
        A(mf(kk, 0, 1))
        for l in R[3:]: A(l)
        A('s_waitcnt lgkmcnt(6)')
        A(mf(kk, 1, 0))
        if extra: A(extra)
        A(mf(kk, 1, 1))
    stamp(A, c, 1)
    lds_wait(A, 109, 111, 'le', '1', sleep=0)
    stamp(A, c, 2)
    if c.gdbg:
        A('v_mov_b32 v135, 0')
        A('s_memtime s[44:45]')
    for l in reads(0): A(l)
    A('s_mov_b32 s64, 1')
    A('s_mov_b32 s65, 0')
    A('L_g1_loop:')
    kstep(0); kstep(1); kstep(2, 'ds_read_b32 v111, v109')
    A('v_mov_b32 v112, s64')
    A('s_add_u32 s65, s65, 1')
    A('s_cmp_eq_u32 s65, %d' % NS)
    A('s_cselect_b32 s68, %d, 1' % (1 - NS))
    A('s_cselect_b32 s65, 0, s65')
    A('s_lshl_b32 s68, s68, 15')
    A('s_waitcnt lgkmcnt(0)')
    A(mf(3, 0, 0))
    if c.gdbg:
        A('s_mov_b32 m0, s64')
        A('s_nop 0')
        A('v_writelane_b32 v135, s44, m0')
        A('s_memtime s[44:45]')
    A('s_mov_b64 exec, 1\nds_write_b32 v110, v112\ns_mov_b64 exec, -1')
    A('v_readfirstlane_b32 s69, v111')
    A('v_add_u32 v%d, s68, v%d' % (aA[0], aA[0]))
    A('v_add_u32 v%d, s68, v%d' % (aB[0], aB[0]))
    A('s_cmp_gt_u32 s69, s64')
    A('s_cbranch_scc0 L_g1_slow')
    R = reads(0)
    for l in R[:3]: A(l)
    A(mf(3, 0, 1))
    A('v_add_u32 v%d, s68, v%d' % (aA[1], aA[1]))
    for l in R[3:]: A(l)
    A(mf(3, 1, 0))
    for kk in range(1, 4): A('v_add_u32 v%d, s68, v%d' % (aB[kk], aB[kk]))
    A('s_add_u32 s64, s64, 1')
    A('s_cmp_lt_u32 s64, 10')
    A(mf(3, 1, 1))
    A('s_cbranch_scc1 L_g1_loop')
    A('s_branch L_g1_last')
    A('L_g1_slow:')
    if c.gdbg:
        A('s_add_u32 m0, s64, 16')
        A('s_nop 0')
        A('v_writelane_b32 v135, 1, m0')
    A(mf(3, 0, 1))
    A('v_add_u32 v%d, s68, v%d' % (aA[1], aA[1]))
    for kk in range(1, 4): A('v_add_u32 v%d, s68, v%d' % (aB[kk], aB[kk]))
    A(mf(3, 1, 0))
    A(mf(3, 1, 1))
    lds_wait(A, 109, 111, 'lt', 's64', sleep=c.gsleep)
    for l in R: A(l)
    A('s_add_u32 s64, s64, 1')
    A('s_cmp_lt_u32 s64, 10')
    A('s_cbranch_scc1 L_g1_loop')
    A('L_g1_last:')
    A('v_mov_b32 v109, %d' % (SYNC + Y_REC))
    kstep(0); kstep(1); kstep(2)
    A('s_waitcnt lgkmcnt(0)')
    for fb in range(2):
        for tb in range(2): A(mf(3, fb, tb))
    if c.gdbg:
        A('v_writelane_b32 v135, s44, 10')
        A('s_memtime s[44:45]')
        A('s_waitcnt lgkmcnt(0)')
        A('v_writelane_b32 v135, s44, 11')
        A('s_lshl_b32 s44, s2, 2')
        A('s_add_u32 s44, s44, s3')
        A('s_lshl_b32 s44, s44, 8')
        A('s_add_u32 s44, s44, %d' % (STAMP + 0x80000))
        A('v_lshl_add_u32 v134, v1, 2, s44')
        A('global_store_dword v134, v135, s[36:37]')
    stamp(A, c, 3)
    lds_wait(A, 109, 111, 'ne', '0', sleep=0)
    A('v_readfirstlane_b32 s59, v111')
    if c.acq == 1: A('buffer_inv sc1')
    A('ds_read_b64 v[112:113], v106')
    A('ds_read_b64 v[114:115], v106 offset:256')
    A('ds_read_b64 v[116:117], v107')
    A('ds_read_b64 v[118:119], v107 offset:256')
    A('v_mov_b32 v111, 11')
    A('s_waitcnt lgkmcnt(0)')
    A('s_mov_b64 exec, 1\nds_write_b32 v110, v111\ns_mov_b64 exec, -1')
    stamp(A, c, 4)
    A('s_cmp_eq_u32 s71, 27')
    A('s_cbranch_scc1 L_g_nogelu')
    for fb in range(2):
        for tb in range(2):
            d = V(ACC + 16 * (2 * fb + tb), 16)
            A('v_mfma_f32_32x32x8_bf16 %s, %s, %s, %s' % (d, V(116 + 2 * fb, 2), V(112 + 2 * tb, 2), d))
    c1 = 2 * 0.7978845608028654 * LOG2E
    c2 = c1 * 0.044715
    A('s_mov_b32 s68, %s' % fbits(-c1))
    A('s_mov_b32 s69, %s' % fbits(-c2))
    for tb in range(2):
        b = 124 + 4 * tb
        A('v_lshlrev_b32 v%d, 16, v%d' % (b, 113 + 2 * tb))
        A('v_rcp_f32 v%d, v%d' % (b + 1, b))
        A('v_mul_f32 v%d, s68, v%d' % (b + 2, b + 1))
        A('v_mul_f32 v%d, v%d, v%d' % (b + 3, b + 1, b + 1))
        A('v_mul_f32 v%d, v%d, v%d' % (b + 3, b + 3, b + 1))
        A('v_mul_f32 v%d, s69, v%d' % (b + 3, b + 3))
    T = 68
    OUT = [84, 88]
    n = 0
    for fb in range(2):
        for tb in range(2):
            b = 124 + 4 * tb
            for p in range(2):
                a0 = ACC + 16 * (2 * fb + tb) + 8 * p
                t = T + 8 * (n & 1)
                o = OUT[n & 1]
                for q in range(4): A('v_pk_mul_f32 %s, %s, %s' % (V(t + 2 * q, 2), V(a0 + 2 * q, 2), V(a0 + 2 * q, 2)))
                for q in range(4): A('v_pk_fma_f32 %s, %s, %s, %s op_sel:[1,0,0] op_sel_hi:[1,1,0]' % (V(t + 2 * q, 2), V(b + 2, 2), V(t + 2 * q, 2), V(b + 2, 2)))
                for q in range(4): A('v_pk_mul_f32 %s, %s, %s' % (V(t + 2 * q, 2), V(t + 2 * q, 2), V(a0 + 2 * q, 2)))
                for q in range(8): A('v_exp_f32 v%d, v%d' % (t + q, t + q))
                for q in range(4): A('v_pk_fma_f32 %s, %s, %s, %s op_sel:[0,0,0] op_sel_hi:[1,0,0]' % (V(t + 2 * q, 2), V(t + 2 * q, 2), V(b, 2), V(b, 2)))
                for q in range(8): A('v_rcp_f32 v%d, v%d' % (t + q, t + q))
                for q in range(4): A('v_pk_mul_f32 %s, %s, %s' % (V(t + 2 * q, 2), V(t + 2 * q, 2), V(a0 + 2 * q, 2)))
                for q in range(4): A('v_cvt_pk_bf16_f32 v%d, v%d, v%d' % (o + q, t + 2 * q, t + 2 * q + 1))
                A('buffer_store_dwordx4 %s, v108, s[40:43], s%d offen offset:%d sc1' % (V(o, 4), 66 + fb, tb * 2048 + p * 512))
                n += 1
    stamp(A, c, 5)
    A('v_mov_b32 v111, 12')
    A('s_mov_b64 exec, 1\nds_write_b32 v110, v111\ns_mov_b64 exec, -1')
    A('s_waitcnt vmcnt(0)')
    gflag(A, 's70', 100, 101)
    stamp(A, c, 6)
    A('s_branch L_g_post')
    A('L_g_nogelu:')
    lds_set(A, 's75', 12, 100, 101)
    A('L_g_post:')
    A('s_mul_i32 s63, s3, 14')
    A('v_min_u32 v100, 13, v1')
    A('v_add_u32 v100, s63, v100')
    A('v_min_u32 v100, 53, v100')
    A('v_lshlrev_b32 v100, 2, v100')
    A('s_lshr_b32 s63, s57, 1')
    A('s_lshl_b32 s63, s63, 8')
    A('s_add_u32 s63, s63, %d' % FW)
    gpoll(A, 100, 101, 's63', c.wsleep)
    for l in wloads_list(): A(l)
    A('v_mov_b32 v100, %d' % (SYNC + Y_KD + 12))
    lds_wait(A, 100, 101, 'ne', '0', sleep=1)
    A('s_cmp_eq_u32 s3, 3')
    A('s_cselect_b32 s68, 0x70000000, 0')
    if c.wl:
        A('s_mul_i32 s64, s3, 20480')
        for j in range(4):
            A('s_add_u32 s74, s72, %d' % ((7 + 2 * j) * 5120))
            if j == 3: A('s_add_u32 s74, s74, s68')
            A('s_add_u32 m0, s64, %d' % (j * 5120))
            for i in range(4): A('buffer_load_dwordx4 v2, s[40:43], s74 offen offset:%d%s lds' % (1024 * i, SC[0]))
            A('s_add_u32 m0, s64, %d' % (j * 5120 + 4096))
            A('buffer_load_dwordx4 v3, s[40:43], s74 offen%s lds' % SC[0])

def conv_addr(A, sreg, vA, vB, vS, t):
    A('v_and_b32 v%d, 15, v1' % t)
    A('v_lshrrev_b32 v%d, 4, v1' % (t + 1))
    A('v_lshlrev_b32 v%d, 3, v%d' % (t + 2, t + 1))
    A('v_sub_u32 v%d, v%d, v%d' % (t + 2, t + 2, t))
    A('v_add_u32 v%d, %d, v%d' % (t + 2, 2031 - 32 * 63, t + 2))
    A('v_and_b32 v%d, 3, v%d' % (t + 3, t + 2))
    A('v_sub_u32 v%d, v%d, v%d' % (t + 2, t + 2, t + 3))
    A('v_mul_u32_u24 v%d, %d, v%d' % (t + 3, CP, t + 3))
    A('v_lshl_add_u32 v%d, v%d, 1, v%d' % (t + 2, t + 2, t + 3))
    A('s_mul_i32 s64, %s, %d' % (sreg, RSZ))
    A('s_add_u32 s64, s64, %d' % (REG0 + CFRONT))
    A('v_add_u32 v%d, s64, v%d' % (vA, t + 2))
    A('v_lshlrev_b32 v%d, 5, v%d' % (t + 2, t))
    A('v_lshl_add_u32 v%d, v%d, 4, v%d' % (t + 3, t + 1, t + 2))
    A('s_mul_i32 s64, %s, %d' % (sreg, XSZ))
    A('s_add_u32 s64, s64, %d' % (XR0 + 512 - 32 - 64 * 7))
    A('v_add_u32 v%d, s64, v%d' % (vB, t + 3))
    A('v_lshl_add_u32 v%d, v%d, 3, v%d' % (vS, t + 1, t + 2))

def g_post(A, c):
    stamp(A, c, 7)
    A('s_mul_i32 s63, s3, 7')
    A('v_min_u32 v100, 6, v1')
    A('v_add_u32 v100, s63, v100')
    A('v_min_u32 v100, 26, v100')
    A('v_lshlrev_b32 v100, 2, v100')
    A('s_lshl_b32 s63, s56, 7')
    A('s_add_u32 s63, s63, %d' % FH)
    A('s_mul_i32 s66, s56, 54')
    A('s_mul_i32 s67, s3, 14')
    A('s_add_u32 s66, s66, s67')
    A('s_lshl_b32 s66, s66, 12')
    A('s_add_u32 s66, s66, %d' % HOFF)
    gpoll(A, 100, 101, 's63', c.hsleep)
    if c.acq == 1: A('buffer_inv sc1')
    stamp(A, c, 8)
    HB = 84
    ACC = 4
    def hloads(i):
        L = ['s_add_u32 s67, s66, %d' % (i * 4096)]
        if i >= 12: L.append('s_add_u32 s67, s67, s68')
        for tb in range(4):
            L.append('buffer_load_dwordx4 %s, v2, s[40:43], s67 offen offset:%d%s' % (V(HB + 16 * (i % 3) + 4 * tb, 4), tb * 1024, SC[0]))
        return L
    def wglob(st):
        L = ['s_add_u32 s74, s72, %d' % (st * 5120)]
        if st >= 12: L.append('s_add_u32 s74, s74, s68')
        return L + [w_load(st, db, 's74') for db in range(5)]
    def wlds(st):
        j = (st - 7) // 2
        return ['ds_read_b128 %s, v132 offset:%d' % (V(WREG + 20 * (st % 6) + 4 * db, 4), j * 5120 + db * 1024) for db in range(5)]
    seq = []
    for i in range(2):
        for l in hloads(i):
            A(l)
            if l.startswith('buffer'): seq.append(('h', i))
    A('s_mul_i32 s64, s3, 20480')
    A('v_add_u32 v132, s64, v2')
    pend = []
    for i in range(14):
        sp = []
        if i + 2 < 14: sp += [(l, ('h', i + 2)) for l in hloads(i + 2)]
        st = i + 5
        if i >= 1 and st < 14:
            if c.wl and st % 2 == 1:
                sp += [(l, None) for l in wlds(st)]
            else:
                sp += [(l, ('w', st)) for l in wglob(st)]
        if i == c.sgate: lds_set(A, 's75', 13, 133, 134)
        need = max([k for k, t in enumerate(seq) if t in (('h', i), ('w', i))])
        A('s_waitcnt vmcnt(%d) lgkmcnt(0)' % (len(seq) - 1 - need))
        if i == 12:
            A('s_cmp_eq_u32 s3, 3')
            A('s_cbranch_scc1 L_g2_done')
        w = WREG + 20 * (i % 6)
        hb = HB + 16 * (i % 3)
        for db in range(5):
            for tb in range(4):
                d = V(ACC + 4 * (4 * db + tb), 4)
                A('v_mfma_f32_16x16x32_bf16 %s, %s, %s, %s' % (d, V(w + 4 * db, 4), V(hb + 4 * tb, 4), d if i else '0'))
                if (4 * db + tb) % 2 == 1:
                    while sp:
                        l, t = sp.pop(0); A(l)
                        if l.startswith('buffer'): seq.append(t)
                        if not l.startswith('s_'): break
        assert not sp
    A('L_g2_done:')
    stamp(A, c, 9)
    A('v_lshrrev_b32 v100, 5, v1')
    A('v_lshlrev_b32 v100, 6, v100')
    A('v_xor_b32 v100, v100, v132')
    A('v_xor_b32 v101, 128, v100')
    A('v_lshrrev_b32 v102, 4, v1')
    A('v_lshlrev_b32 v102, 6, v102')
    A('v_xor_b32 v102, v102, v132')
    for db in range(5):
        for tb in range(4):
            t = 4 * db + tb
            A('ds_write_b128 v%d, %s offset:%d' % ((102 if db == 4 else 100 + (db & 1)), V(ACC + 4 * t, 4), t * 1024))
    A('s_waitcnt lgkmcnt(0)')
    A('s_barrier')
    stamp(A, c, 10)
    endpgm(A, c)

def cmul(D, X, Y):
    return ['v_mul_f32 v%d, v%d, v%d' % (D, X, Y),
            'v_mul_f32 v%d, v%d, v%d' % (D + 1, X, Y + 1),
            'v_fma_f32 v%d, -v%d, v%d, v%d' % (D, X + 1, Y + 1, D),
            'v_fmac_f32 v%d, v%d, v%d' % (D + 1, X + 1, Y)]
def zip2(a, b):
    out = []
    for x, y in zip(a, b): out += [x, y]
    return out

def kgen_loads(A):
    A('s_lshl_b32 s64, s63, 8')
    A('v_lshl_add_u32 v3, v1, 2, s64')
    for i in range(6): A('global_load_dword v%d, v3, s[%d:%d]' % (4 + i, 6 + 2 * i, 7 + 2 * i))
    A('s_lshl_b32 s64, s63, 1')
    A('s_and_b32 s64, s64, -4')
    A('s_load_dword s65, s[18:19], s64')
    A('s_load_dword s66, s[20:21], s64')

def kgen(A, c):
    B = A
    B('v_lshl_add_u32 v10, v1, 3, s67')
    B('v_and_b32 v16, 15, v1')
    B('v_mul_u32_u24 v12, %d, v16' % KG_PITCH)
    B('v_lshrrev_b32 v17, 4, v1')
    B('v_lshl_add_u32 v12, v17, 4, v12')
    B('v_add_u32 v11, s67, v12')
    B('s_and_b32 s64, s63, 1')
    B('s_lshl_b32 s64, s64, 4')
    B('s_lshr_b32 s65, s65, s64')
    B('s_lshl_b32 s65, s65, 16')
    B('s_lshr_b32 s66, s66, s64')
    B('s_lshl_b32 s66, s66, 16')
    B('v_mov_b32 v12, s65')
    B('s_mov_b32 s69, %s' % fbits(L2E_HI))
    B('v_mul_f32 v13, s69, v12')
    B('v_fma_f32 v15, v12, s69, -v13')
    B('v_fmac_f32 v15, %s, v12' % fbits(L2E_LO))
    B('v_exp_f32 v13, v13')
    B('v_mul_f32 v15, %s, v15' % fbits(math.log(2.0)))
    B('v_fma_f32 v13, v13, v15, v13')
    B('v_cvt_pk_bf16_f32 v13, v13, v13')
    B('v_lshlrev_b32 v15, 16, v13')
    blk = [20, 60]
    def setup(mi):
        b = blk[mi]
        L = []
        un = (lambda d, s: 'v_lshlrev_b32 v%d, 16, v%d' % (d, s)) if mi == 0 else (lambda d, s: 'v_and_b32 v%d, 0xffff0000, v%d' % (d, s))
        for i in range(6): L.append(un(b + i, 4 + i))
        for i in range(4): L.append('v_mul_f32 v%d, v15, v%d' % (b + i, b + i))
        L.append('v_mul_f32 v%d, s69, v%d' % (b, b))
        L.append('v_mul_f32 v%d, 0.15915494, v%d' % (b + 1, b + 1))
        L += cmul(b + 16, b + 4, b + 2)
        for n_, (k, w) in enumerate(((8.0, 8), (1.0, 6), (128.0, 10))):
            t = b + 24 + 2 * n_
            L.append('v_mul_f32 v%d, %s, v%d' % (t, fbits(k), b))
            L.append('v_mul_f32 v%d, %s, v%d' % (t + 1, fbits(k), b + 1))
            L.append('v_exp_f32 v%d, v%d' % (t, t))
            L.append('v_fract_f32 v%d, v%d' % (t + 1, t + 1))
            L.append('v_cos_f32 v%d, v%d' % (b + w, t + 1))
            L.append('v_sin_f32 v%d, v%d' % (b + w + 1, t + 1))
            L.append('v_mul_f32 v%d, v%d, v%d' % (b + w, t, b + w))
            L.append('v_mul_f32 v%d, v%d, v%d' % (b + w + 1, t, b + w + 1))
        L += cmul(b + 12, b + 6, b + 6)
        L += cmul(b + 14, b + 12, b + 12)
        return L
    for l in zip2(setup(0), setup(1)): B(l)
    B('s_cmp_eq_u32 s74, 0')
    B('s_cbranch_scc1 L_hook1')
    w2n_finish(B, c)
    B('L_hook1:')
    B('v_lshlrev_b32 v214, 4, v1')
    B('v_add_u32 v215, 4096, v214')
    ROW = 100
    cnt = [0]
    def emit_row(src, neg):
        p = ROW + 2 * cnt[0]; cnt[0] += 1
        for mi in range(2):
            b = blk[mi]
            B('v_cvt_pk_bf16_f32 v%d, v%d, %sv%d' % (p + mi, b + src, '-' if neg else '', b + src + 1))
    def mul2(D, X, Y):
        for l in zip2(cmul(blk[0] + D, blk[0] + X, blk[0] + Y), cmul(blk[1] + D, blk[1] + X, blk[1] + Y)): B(l)
    def chain(g, step, n, neg=True):
        cur = g
        for i in range(n):
            nx = 20 + 2 * (i & 1)
            if i + 1 < n: mul2(nx, cur, step)
            emit_row(cur, neg)
            cur = nx
    gi = [0]
    def nextg():
        a = 16 + 2 * (gi[0] & 1); gi[0] += 1
        b = 16 + 2 * (gi[0] & 1)
        mul2(b, a, 10)
        return b
    chain(8, 8, 15, False)
    chain(16, 6, 8)
    g = nextg(); chain(g, 6, 8)
    for i in range(2):
        g = nextg(); chain(g, 12, 4)
    for i in range(4):
        g = nextg(); chain(g, 14, 2)
    for i in range(9):
        g = nextg(); emit_row(g, True)
    assert cnt[0] == 56
    B('v_mov_b32 v96, 0x3f80')
    B('v_mov_b32 v97, 0x3f80')
    UF = 20; VF = 52; ACC = 84
    def wr(row, reg): B('ds_write_b64 v10, %s offset:%d' % (V(reg, 2), row * KG_PITCH))
    def rd(dst):
        for ks in range(8): B('ds_read_b128 %s, v11 offset:%d' % (V(dst + 4 * ks, 4), ks * 64))
    def mm(tile, swap):
        for ks in range(8):
            d = V(ACC + 4 * tile, 4)
            a, b = V(UF + 4 * ks, 4), V(VF + 4 * ks, 4)
            if swap: a, b = b, a
            B('v_mfma_f32_16x16x32_bf16 %s, %s, %s, %s' % (d, a, b, d if ks else '0'))
    def uphase():
        wr(0, 96)
        for j in range(1, 16): wr(j, ROW + 2 * (j - 1))
        rd(UF)
    stamp(B, c, 2)
    B('s_cmp_eq_u32 s74, 0')
    B('s_cbranch_scc1 L_hook2')
    B('v_mov_b32 v98, %d' % (SYNC + Y_LPROG))
    lds_wait(B, 98, 99, 'le', str(c.wgate), sleep=3)
    for j in range(10): B(w2n_store(j))
    B('L_hook2:')
    B('v_lshrrev_b32 v13, 1, v17')
    B('v_and_b32 v14, 1, v17')
    B('v_lshlrev_b32 v220, 8, v13')
    B('v_lshl_add_u32 v220, v16, 4, v220')
    B('v_lshl_add_u32 v220, v14, 3, v220')
    B('v_add_u32 v220, s67, v220')
    B('v_lshlrev_b32 v221, 7, v17')
    B('v_sub_u32 v222, 3, v13')
    B('v_lshlrev_b32 v222, v222, v16')
    B('v_add3_u32 v221, v221, v222, s67')
    B('v_mul_u32_u24 v222, 60, v13')
    B('v_add3_u32 v222, v221, v222, 4')
    B('v_lshlrev_b32 v223, 5, v16')
    B('v_lshl_add_u32 v223, v17, 3, v223')
    B('v_add_u32 v223, s67, v223')
    B('v_cmp_eq_u32 vcc, 0, v1')
    B('v_mov_b32 v12, s66')
    B('v_cndmask_b32 v12, 0, v12, vcc')
    groups = [(3, 0, 8), (2, 8, 12), (1, 12, 14), (0, 14, 16)]
    GA = 224
    B('v_lshlrev_b32 v18, 1, v1')
    for gi_, (seg, k0, k1) in enumerate(groups):
        for w in range(3):
            d = GA + 3 * gi_ + w
            B('v_sub_u32 v%d, %d, v18' % (d, 2048 - 128 * (k1 - 1) - w))
            if seg:
                B('v_bfe_u32 v19, v%d, %d, 1' % (d, seg))
                B('v_add3_u32 v%d, v%d, v19, %d' % (d, d, (1 << (seg - 1)) - 1))
                B('v_lshrrev_b32 v%d, %d, v%d' % (d, seg, d))
            B('v_lshl_add_u32 v%d, v%d, 1, s67' % (d, d))
    B('v_cndmask_b32 v236, 0, -1, vcc')
    B('s_cmp_eq_u32 s74, 0')
    B('s_cbranch_scc1 L_hook3')
    get_nonce(B, 98, 99)
    B('s_waitcnt vmcnt(0)')
    gflag(B, 's74', 98, 99)
    B('L_hook3:')
    B('v_mov_b32 v98, %d' % (SYNC + Y_GPROG))
    lds_wait(B, 98, 99, 'le', str(c.kgate), sleep=c.ksleep)
    B('s_setprio %d' % c.kmprio)
    uphase()
    for t in range(3):
        for r in range(16):
            col = 16 * t + r
            if col <= 40: wr(r, ROW + 2 * (15 + col))
            if t > 0 and r == 7:
                B('s_waitcnt lgkmcnt(8)')
                mm(t - 1, True)
        rd(VF)
    B('v_add_f32 v%d, v%d, v12' % (ACC, ACC))
    for t in range(2):
        B('v_cvt_pk_bf16_f32 v%d, v%d, v%d' % (4 + 2 * t, ACC + 4 * t, ACC + 4 * t + 1))
        B('v_cvt_pk_bf16_f32 v%d, v%d, v%d' % (5 + 2 * t, ACC + 4 * t + 2, ACC + 4 * t + 3))
    B('ds_write_b64 v220, v[4:5]')
    B('ds_write_b32 v221, v6 offset:512')
    B('ds_write_b32 v222, v7 offset:512')
    B('s_waitcnt lgkmcnt(3)')
    mm(2, False)
    def gath(k):
        gi_ = [i for i, g in enumerate(groups) if g[1] <= k < g[2]][0]
        seg, k0, k1 = groups[gi_]
        off = (k1 - 1 - k) * (256 >> seg) + 256 * seg
        a = GA + 3 * gi_
        B('ds_read_u16 v%d, v%d offset:%d' % (KX + k, a, off))
        B('ds_read_u16 v%d, v%d offset:%d' % (KY + k, a + 1, off))
        B('ds_read_u16 v%d, v%d offset:%d' % (KZ + k, a + 2, off))
    for k in range(9, 16): gath(k)
    B('v_cvt_pk_bf16_f32 v8, v%d, v%d' % (ACC + 8, ACC + 9))
    B('v_cvt_pk_bf16_f32 v9, v%d, v%d' % (ACC + 10, ACC + 11))
    B('ds_write_b64 v223, v[8:9] offset:1024')
    for k in range(9): gath(k)
    B('v_and_b32 v%d, 0xffff, v4' % (KX + 16))
    B('v_and_b32 v%d, v236, v%d' % (KX + 16, KX + 16))
    B('v_mov_b32 v%d, 0' % (KZ + 16))
    B('s_lshl_b32 s68, s62, 2')
    B('s_add_u32 s68, s68, %d' % (SYNC + Y_KD))
    lds_set(B, 's68', 1, 20, 21)
    B('s_waitcnt lgkmcnt(0)')
    for k in range(16):
        B('v_lshl_or_b32 v%d, v%d, 16, v%d' % (KZ + k, KZ + k, KY + k))
        B('v_lshl_or_b32 v%d, v%d, 16, v%d' % (KX + k, KY + k, KX + k))

KX, KY, KZ = 130, 150, 170
def kcopies(B, c):
    B('v_lshl_add_u32 v40, v1, 2, s67')
    src = [KZ, KX, KZ, KX]
    for cp, d in enumerate((0, -4, -4, -8)):
        B('v_add_u32 v%d, %d, v40' % (41 + cp, cp * CP + CFRONT + d))
    for k in range(0, 16, 2):
        for cp in range(4):
            B('ds_write2st64_b32 v%d, v%d, v%d offset0:%d offset1:%d' % (41 + cp, src[cp] + k, src[cp] + k + 1, k, k + 1))
    B('s_mov_b64 exec, 0x3ff')
    for cp in range(4): B('ds_write_b32 v%d, v%d offset:4096' % (41 + cp, src[cp] + 16))
    B('s_mov_b64 exec, -1')

def x_loads(A, c):
    A('s_and_b32 s64, s2, 1')
    A('s_mul_i32 s64, s64, 3')
    A('s_add_u32 s64, s64, s58')
    for i in range(3):
        if i == 2: A('s_add_u32 s64, s58, 2')
        A('s_lshl_b32 s65, s64, 12')
        A('s_mov_b32 m0, %d' % (XR0 + i * XSZ + 512))
        for k in range(4): A('buffer_load_dwordx4 v30, s[40:43], s65 offen offset:%d sc1 lds' % (1024 * k))
        if i == 0: A('s_add_u32 s64, s64, 1')
    A('v_lshlrev_b32 v54, 3, v1')
    A('v_add_u32 v54, %d, v54' % XR0)
    A('v_mov_b32 v56, 0')
    A('v_mov_b32 v57, 0')
    for i in range(3): A('ds_write_b64 v54, v[56:57] offset:%d' % (i * XSZ))

def nonce_loop(A, va, vt, preloaded):
    n = uid()
    A('s_mov_b32 s77, 0')
    if preloaded: A('s_branch L_nq%d' % n)
    A('L_np%d:' % n)
    A('buffer_load_dword v%d, v%d, s[52:55], 0 offen offset:252 sc1' % (vt, va))
    A('L_nq%d:' % n)
    A('s_add_u32 s77, s77, 1')
    A('s_waitcnt vmcnt(0)')
    A('v_readfirstlane_b32 s59, v%d' % vt)
    A('s_cmp_lg_u32 s59, 0')
    A('s_cbranch_scc1 L_nx%d' % n)
    A('s_sleep 4')
    A('s_cmp_lt_u32 s77, %d' % SPIN_MAX)
    A('s_cbranch_scc1 L_np%d' % n)
    A('s_mov_b32 s59, 1')
    A('L_nx%d:' % n)
    lds_set(A, Y_NONCE, 's59', va, vt)

def w2n_issue(A, c):
    A.srd(48, 28, 1728 * 1280)
    A('s_sub_u32 s68, s2, 32')
    A('s_lshr_b32 s73, s68, 2')
    A('s_and_b32 s68, s68, 3')
    A('v_lshrrev_b32 v20, 2, v1')
    A('v_mul_u32_u24 v20, 1280, v20')
    A('v_and_b32 v21, 3, v1')
    A('v_lshl_add_u32 v20, v21, 4, v20')
    A('s_mul_i32 s70, s73, %d' % (32 * 1280))
    A('s_mul_i32 s71, s68, 320')
    A('s_add_u32 s70, s70, s71')
    for rg in range(2):
        for g in range(5):
            A('s_add_u32 s71, s70, %d' % (rg * 16 * 1280 + g * 64))
            A('s_add_u32 m0, s67, %d' % (rg * 5120 + g * 1024))
            A('buffer_load_dwordx4 v20, s[48:51], s71 offen lds')
    A('s_mul_i32 s70, s68, 108')
    A('s_add_u32 s70, s70, s73')
    A('s_mul_i32 s70, s70, 5120')
    A('s_add_u32 s70, s70, %d' % W2N)
    A('s_add_u32 s71, s70, %d' % (54 * 5120))
    A('s_lshl_b32 s74, s68, 6')
    A('s_add_u32 s74, s74, s73')
    A('s_lshl_b32 s74, s74, 2')
    A('s_add_u32 s74, s74, %d' % FW)

def w2n_finish(A, c):
    A('v_lshrrev_b32 v212, 4, v1')
    A('v_lshrrev_b32 v213, 1, v212')
    A('v_mul_u32_u24 v213, 5120, v213')
    A('v_and_b32 v212, 1, v212')
    A('v_lshl_add_u32 v213, v212, 8, v213')
    A('v_bfe_u32 v212, v1, 2, 2')
    A('v_lshl_add_u32 v213, v212, 6, v213')
    A('v_and_b32 v212, 3, v1')
    A('v_lshl_add_u32 v213, v212, 3, v213')
    A('v_add_u32 v213, s67, v213')
    A('s_waitcnt vmcnt(0)')
    for j in range(10):
        o = (j >> 1) * 1024 + (j & 1) * 32
        A('ds_read_b64_tr_b16 %s, v213 offset:%d' % (V(216 + 4 * j, 2), o))
        A('ds_read_b64_tr_b16 %s, v213 offset:%d' % (V(218 + 4 * j, 2), o + 512))
    A('s_waitcnt lgkmcnt(0)')

def w2n_store(j):
    db = j % 5
    so = 's70' if j < 5 else 's71'
    if db < 4: return 'buffer_store_dwordx4 %s, v214, s[40:43], %s offen offset:%d sc1' % (V(216 + 4 * j, 4), so, db * 1024)
    return 'buffer_store_dwordx4 %s, v215, s[40:43], %s offen sc1' % (V(216 + 4 * j, 4), so)

def colsum(A, c):
    A('s_lshr_b32 s68, s38, 1')
    A('s_lshl_b32 s68, s68, 2')
    A('s_add_u32 s68, s68, s39')
    A('s_cmp_ge_u32 s68, 14')
    A('s_cbranch_scc1 L_cs_done')
    A('s_and_b32 s69, s38, 1')
    A('s_mul_i32 s69, s69, 14')
    A('s_add_u32 s68, s68, s69')
    A('s_cmp_ge_u32 s68, 27')
    A('s_cbranch_scc1 L_cs_done')
    A('s_setprio 1')
    A.srd(48, 24, 640 * 3456)
    A('v_lshrrev_b32 v10, 3, v1')
    A('v_and_b32 v12, 7, v1')
    A('v_mul_u32_u24 v13, 3456, v10')
    A('v_lshl_add_u32 v11, v12, 4, v13')
    A('s_mul_i32 s69, s62, %d' % (320 * 3456))
    A('s_lshl_b32 s70, s68, 7')
    A('s_add_u32 s69, s69, s70')
    for i in range(40):
        A('buffer_load_dwordx4 %s, v11, s[48:51], s69 offen' % V(24 + 4 * i, 4))
        A('s_add_u32 s69, s69, %d' % (8 * 3456))
    for e in range(8): A('v_mov_b32 v%d, 0' % (16 + e))
    A('s_mov_b32 s70, 0x3f80')
    A('s_mov_b32 s71, 0x3f800000')
    for i in range(40):
        if i % 4 == 0: A('s_waitcnt vmcnt(%d)' % (36 - i))
        for q in range(4):
            r = 24 + 4 * i + q
            A('v_dot2_f32_bf16 v%d, v%d, s70, v%d' % (16 + 2 * q, r, 16 + 2 * q))
            A('v_dot2_f32_bf16 v%d, v%d, s71, v%d' % (17 + 2 * q, r, 17 + 2 * q))
    A('v_lshl_add_u32 v14, v1, 5, s67')
    A('ds_write_b128 v14, v[16:19]')
    A('ds_write_b128 v14, v[20:23] offset:16')
    A('v_lshl_add_u32 v14, v1, 2, s67')
    for k in range(8): A('ds_read_b32 v%d, v14 offset:%d' % (24 + k, 256 * k))
    A('s_waitcnt lgkmcnt(0)')
    for k in range(4): A('v_add_f32 v%d, v%d, v%d' % (24 + k, 24 + k, 28 + k))
    A('v_add_f32 v24, v24, v25')
    A('v_add_f32 v26, v26, v27')
    A('v_add_f32 v24, v24, v26')
    A('v_cvt_pk_bf16_f32 v25, v24, v24')
    A('v_lshlrev_b32 v25, 16, v25')
    A('v_sub_f32 v26, v24, v25')
    A('v_cvt_pk_bf16_f32 v28, v25, v26')
    get_nonce(A, 30, 29)
    A('s_mul_i32 s69, s62, %d' % CSG)
    A('s_lshl_b32 s70, s68, 9')
    A('s_add_u32 s69, s69, s70')
    A('s_add_u32 s69, s69, %d' % CS)
    A('v_lshlrev_b32 v14, 3, v1')
    A('buffer_store_dwordx2 v[28:29], v14, s[40:43], s69 offen sc1')
    A('s_setprio 0')
    A('L_cs_done:')

def records_addr(A, c):
    A.srd(52, 34, 256)
    A('v_lshlrev_b32 v30, 4, v1')
    A('s_cmp_eq_u32 s61, 13')
    A('s_cselect_b32 s72, 0x1f0, -1')
    A('v_and_b32 v31, s72, v30')
    A('v_lshlrev_b32 v32, 2, v1')
    A('s_lshr_b32 s72, s58, 7')
    A('s_add_u32 s73, s58, 4')
    A('s_lshr_b32 s73, s73, 7')
    A('s_sub_u32 s73, s73, s72')
    A('s_cmp_eq_u32 s73, 0')
    A('s_cselect_b32 s73, 0x7f, -1')
    A('v_and_b32 v33, s73, v32')
    A('s_lshl_b32 s72, s72, 7')
    A('s_add_u32 s72, s72, %d' % FXN)
    A('v_mov_b32 v35, 0')

def records_batch(A, c):
    A('buffer_load_dword v36, v35, s[52:55], 0 offen offset:252 sc1')
    A('s_lshl_b32 s73, s60, 10')
    A('s_add_u32 s73, s73, %d' % STAT)
    A('buffer_load_dwordx4 v[40:43], v30, s[40:43], s73 offen sc1')
    A('s_lshl_b32 s73, s61, 10')
    A('s_add_u32 s73, s73, %d' % CS)
    A('buffer_load_dwordx4 v[44:47], v31, s[40:43], s73 offen sc1')
    A('s_add_u32 s73, s73, %d' % CSG)
    A('buffer_load_dwordx4 v[48:51], v31, s[40:43], s73 offen sc1')
    A('buffer_load_dword v37, v33, s[40:43], s72 offen sc1')

def records_finish(A, c):
    A('s_mov_b32 s76, 0')
    A('L_rec_chk:')
    A('s_waitcnt vmcnt(0)')
    A('v_readfirstlane_b32 s59, v36')
    A('v_mov_b32 v39, 0')
    for r in (41, 43, 45, 47, 49, 51):
        A('v_xor_b32 v52, s59, v%d' % r)
        A('v_or_b32 v39, v39, v52')
    A('v_cmp_ne_u32 vcc, 0, v39')
    A('s_cmp_eq_u32 s59, 0')
    A('s_cbranch_scc1 L_rec_again')
    A('s_cmp_eq_u64 vcc, 0')
    A('s_cbranch_scc1 L_rec_ok')
    A('L_rec_again:')
    A('s_add_u32 s76, s76, 1')
    A('s_cmp_ge_u32 s76, %d' % SPIN_MAX)
    A('s_cbranch_scc1 L_rec_giveup')
    A('s_sleep 10')
    records_batch(A, c)
    A('s_branch L_rec_chk')
    A('L_rec_giveup:')
    A('s_or_b32 s59, s59, 1')
    A('L_rec_ok:')
    A('s_mov_b32 s73, 0x01000100')
    A('v_lshrrev_b32 v41, 16, v40')
    A('v_lshrrev_b32 v43, 16, v42')
    A('v_perm_b32 v40, v40, v40, s73')
    A('v_perm_b32 v42, v42, v42, s73')
    A('v_and_b32 v45, 0xffff, v38')
    A('v_lshrrev_b32 v47, 16, v38')
    A('v_mov_b32 v49, 0')
    A('v_mov_b32 v51, 0')
    A('v_add_u32 v53, %d, v30' % REC)
    lds_wait(A, 20, 23, 'le', '7', sleep=0)
    A('ds_write_b128 v53, v[40:43]')
    A('ds_write_b128 v53, v[44:47] offset:1024')
    A('ds_write_b128 v53, v[48:51] offset:2048')
    lds_set(A, Y_NONCE, 's59', 22, 23)
    lds_set(A, Y_REC, 's59', 22, 23)
    A('s_mov_b32 s74, 0')
    A('v_cmp_eq_u32 vcc, s59, v37')
    A('s_cmp_eq_u64 vcc, -1')
    A('s_cbranch_scc0 L_rec_noxn')
    x_loads(A, c)
    A('s_mov_b32 s74, 1')
    A('L_rec_noxn:')

def b1_load(A):
    A.srd(44, 26, 1728 * 2)
    A('s_lshl_b32 s73, s61, 8')
    A('buffer_load_dword v38, v32, s[44:47], s73 offen')

def conv_body(A, tiles):
    ACC = 8
    FA = [40, 104]; FB = [72, 136]
    mx = max(tiles)
    def reads(s, back):
        L = []
        for i in range(mx + 1):
            L.append('ds_read_b64 %s, v2 offset:%d' % (V(FA[s] + 4 * i, 2), 64 * (63 - 8 * i - 7 + back)))
            L.append('ds_read_b64 %s, v2 offset:%d' % (V(FA[s] + 4 * i + 2, 2), 64 * (63 - 8 * i - 7 + back) + 8))
            L.append('ds_read_b128 %s, v3 offset:%d' % (V(FB[s] + 4 * i, 4), 64 * (8 * i + back)))
        return L
    n = uid()
    for ct in tiles:
        for r in range(4): A('v_mov_b32 v%d, 0' % (ACC + 4 * ct + r))
    for l in reads(0, 0): A(l)
    A('s_mov_b32 s64, 0')
    A('L_cv%d:' % n)
    for s in range(2):
        A('s_waitcnt lgkmcnt(0)')
        M = []
        for ct in sorted(tiles):
            for i in range(ct + 1):
                d = V(ACC + 4 * ct, 4)
                M.append('v_mfma_f32_16x16x32_bf16 %s, %s, %s, %s' % (d, V(FA[s] + 4 * i, 4), V(FB[s] + 4 * (ct - i), 4), d))
        R = reads(1 - s, s + 1)
        nm = len(M); k = 0
        for j, ml in enumerate(M):
            A(ml)
            tgt = min(len(R), int(math.ceil((j + 1) * len(R) / (0.75 * nm))))
            while k < tgt:
                A(R[k]); k += 1
        assert k == len(R)
    A('v_add_u32 v2, 128, v2')
    A('v_add_u32 v3, 128, v3')
    A('s_add_u32 s64, s64, 1')
    A('s_cmp_lt_u32 s64, 4')
    A('s_cbranch_scc1 L_cv%d' % n)
    A('s_lshl_b32 s64, s63, 12')
    A('s_add_u32 s64, s64, %d' % SOFF)
    A('s_waitcnt lgkmcnt(0)')
    for j, ct in enumerate(sorted(tiles)):
        o = 104 + 2 * j
        A('v_cvt_pk_bf16_f32 v%d, v%d, v%d' % (o, ACC + 4 * ct, ACC + 4 * ct + 1))
        A('v_cvt_pk_bf16_f32 v%d, v%d, v%d' % (o + 1, ACC + 4 * ct + 2, ACC + 4 * ct + 3))
        A('buffer_store_dwordx2 %s, v4, s[40:43], s64 offen offset:%d sc1' % (V(o, 2), ct * 512))
    A('s_mov_b64 s[68:69], %d' % sum(1 << t for t in tiles))

def tile_conv(A, c):
    A('s_xor_b32 s70, s2, s62')
    A('s_and_b32 s70, s70, 1')
    A('s_lshl_b32 s71, s62, 1')
    A('s_add_u32 s70, s70, s71')
    A('s_mov_b32 s71, 2')
    conv_addr(A, 's71', 100, 101, 102, 170)
    A('v_add_u32 v100, %d, v100' % (64 * 56))
    A('s_lshl_b32 s71, s70, 9')
    A('v_add_u32 v101, s71, v101')
    for i in range(4): A('v_mov_b32 v%d, 0' % (4 + i))
    A('v_mov_b32 v103, %d' % (SYNC + Y_CV + 8))
    lds_wait(A, 103, 170, 'ne', '0')
    A('s_mov_b32 s71, s70')
    A('L_gt_loop:')
    for i in range(8):
        A('ds_read_b64 %s, v100 offset:%d' % (V(8 + 8 * i, 2), 64 * (7 - i)))
        A('ds_read_b64 %s, v100 offset:%d' % (V(10 + 8 * i, 2), 64 * (7 - i) + 8))
        A('ds_read_b128 %s, v101 offset:%d' % (V(12 + 8 * i, 4), 64 * (7 - i)))
        if i >= 4:
            A('s_waitcnt lgkmcnt(12)')
            A('v_mfma_f32_16x16x32_bf16 v[4:7], %s, %s, v[4:7]' % (V(8 + 8 * (i - 4), 4), V(12 + 8 * (i - 4), 4)))
    A('v_subrev_u32 v100, 512, v100')
    A('v_subrev_u32 v101, 512, v101')
    for i in range(4, 8):
        A('s_waitcnt lgkmcnt(%d)' % (3 * (7 - i)))
        A('v_mfma_f32_16x16x32_bf16 v[4:7], %s, %s, v[4:7]' % (V(8 + 8 * i, 4), V(12 + 8 * i, 4)))
    A('s_sub_u32 s71, s71, 1')
    A('s_cbranch_scc0 L_gt_loop')
    A('s_add_u32 s71, s58, 2')
    A('s_lshl_b32 s64, s71, 12')
    A('s_lshl_b32 s65, s70, 9')
    A('s_add_u32 s64, s64, s65')
    A('s_add_u32 s64, s64, %d' % SOFF)
    A('v_cvt_pk_bf16_f32 v8, v4, v5')
    A('v_cvt_pk_bf16_f32 v9, v6, v7')
    A('buffer_store_dwordx2 v[8:9], v102, s[40:43], s64 offen sc1')
    A('s_mul_i32 s65, s70, 2560')
    A('s_lshl_b32 s71, s71, 2')
    A('s_add_u32 s71, s71, s65')
    A('s_add_u32 s71, s71, %d' % FS)

def conv_and_finish(A, c):
    A('s_setprio 0')
    A('s_sub_u32 s62, s3, 4')
    A('s_lshr_b32 s65, s62, 1')
    A('s_and_b32 s66, s2, 1')
    A('s_mul_i32 s66, s66, 3')
    A('s_add_u32 s63, s58, s66')
    A('s_add_u32 s63, s63, s65')
    conv_addr(A, 's65', 2, 3, 4, 170)
    get_nonce(A, 5, 6)
    A('s_lshl_b32 s65, s65, 2')
    A('s_add_u32 s65, s65, %d' % (SYNC + Y_CV))
    A('v_mov_b32 v5, s65')
    lds_wait(A, 5, 6, 'ne', '0')
    A('v_mov_b32 v5, %d' % (SYNC + Y_XN))
    lds_wait(A, 5, 6, 'ne', '0')
    if c.gate:
        A('s_lshl_b32 s65, s62, 2')
        A('s_add_u32 s65, s65, %d' % (SYNC + Y_GPROG))
        A('v_mov_b32 v5, s65')
        lds_wait(A, 5, 6, 'le', '12', sleep=2)
    stamp(A, c, 5)
    A('s_and_b32 s65, s3, 1')
    A('s_cbranch_scc1 L_cv_h0')
    conv_body(A, [2, 6, 7])
    A('s_branch L_cv_done')
    A('L_cv_h0:')
    conv_body(A, [0, 1, 3, 4, 5])
    A('L_cv_done:')
    stamp(A, c, 6)
    A('s_setprio %d' % c.tprio)
    tile_conv(A, c)
    A('s_setprio 0')
    A.srd(44, 4, 2048 * 1280)
    A.srd(48, 30, 1280)
    A.srd(52, 32, 2048 * 1280)
    A('v_and_b32 v2, 3, v1')
    A('v_lshrrev_b32 v3, 2, v1')
    A('v_lshlrev_b32 v6, 4, v2')
    A('v_lshlrev_b32 v7, 3, v2')
    A('v_mul_u32_u24 v5, 1280, v3')
    A('v_add_u32 v4, v5, v7')
    A('v_add_u32 v5, v5, v6')
    A('s_lshl_b32 s66, s56, 2')
    A('s_add_u32 s66, s66, s62')
    A('s_mul_i32 s66, s66, %d' % (16 * 1280))
    A('s_mul_i32 s67, s57, 160')
    A('s_add_u32 s66, s66, s67')
    A('v_mul_u32_u24 v30, 2560, v1')
    A('v_mov_b32 v31, s59')
    A('s_lshl_b32 s64, s63, 2')
    A('s_add_u32 s64, s64, %d' % FS)
    A('s_waitcnt vmcnt(0)')
    A('s_mov_b64 exec, s[68:69]')
    A('buffer_store_dword v31, v30, s[40:43], s64 offen sc1')
    A('s_mov_b64 exec, 1')
    A('buffer_store_dword v31, v30, s[40:43], s71 offen sc1')
    A('s_mov_b64 exec, -1')
    stamp(A, c, 7)
    A('buffer_load_dwordx4 v[8:11], v5, s[44:47], s66 offen')
    A('buffer_load_dwordx4 v[12:15], v5, s[44:47], s66 offen offset:64')
    A('buffer_load_dwordx2 v[16:17], v4, s[44:47], s66 offen offset:128')
    A('buffer_load_dwordx4 v[20:23], v6, s[48:51], s67 offen')
    A('buffer_load_dwordx4 v[24:27], v6, s[48:51], s67 offen offset:64')
    A('buffer_load_dwordx2 v[28:29], v7, s[48:51], s67 offen offset:128')
    A('v_lshrrev_b32 v30, 3, v1')
    A('s_cmp_lt_u32 s62, 2')
    A('s_cselect_b32 s70, 2, 1')
    A('v_min_u32 v31, s70, v30')
    A('v_and_b32 v32, 7, v1')
    A('v_lshl_add_u32 v31, v31, 5, v32')
    A('v_lshlrev_b32 v31, 2, v31')
    A('s_mul_i32 s68, s57, 80')
    A('s_lshl_b32 s69, s62, 3')
    A('s_add_u32 s68, s68, s69')
    A('s_lshr_b32 s69, s56, 2')
    A('s_mul_i32 s69, s69, 640')
    A('s_add_u32 s69, s69, s68')
    A('s_lshl_b32 s69, s69, 2')
    A('s_add_u32 s69, s69, %d' % FS)
    A('s_lshl_b32 s70, s62, 2')
    A('s_add_u32 s70, s70, %d' % (SYNC + Y_GPROG))
    A('v_mov_b32 v35, s70')
    lds_wait(A, 35, 33, 'le', '13', sleep=4)
    gpoll(A, 31, 33, 's69', 6)
    stamp(A, c, 8)
    A('v_lshlrev_b32 v30, 12, v30')
    A('v_lshl_add_u32 v30, v32, 4, v30')
    A('s_lshl_b32 s68, s68, 12')
    A('s_lshl_b32 s69, s56, 7')
    A('s_add_u32 s68, s68, s69')
    A('s_add_u32 s68, s68, %d' % SOFF)
    A('s_mul_i32 s69, s62, 1040')
    A('v_and_b32 v34, 3, v1')
    A('v_lshlrev_b32 v34, 2, v34')
    A('s_add_u32 m0, s69, %d' % STILE)
    A('buffer_load_dwordx4 v30, s[40:43], s68 offen sc1 lds')
    A('s_add_u32 s68, s68, %d' % (32 * 4096))
    A('s_add_u32 m0, s69, %d' % (STILE + 4 * 1040))
    A('buffer_load_dwordx4 v30, s[40:43], s68 offen sc1 lds')
    A('s_cmp_lt_u32 s62, 2')
    A('s_cbranch_scc0 L_fin_two')
    A('s_add_u32 s68, s68, %d' % (32 * 4096))
    A('s_add_u32 m0, s69, %d' % (STILE + 8 * 1040))
    A('buffer_load_dwordx4 v30, s[40:43], s68 offen sc1 lds')
    A('L_fin_two:')
    XS = 64; BS = 84; SS = 40
    for k in range(10):
        A('v_lshlrev_b32 v%d, 16, v%d' % (XS + 2 * k, 8 + k))
        A('v_and_b32 v%d, 0xffff0000, v%d' % (XS + 2 * k + 1, 8 + k))
        A('v_lshlrev_b32 v%d, 16, v%d' % (BS + 2 * k, 20 + k))
        A('v_and_b32 v%d, 0xffff0000, v%d' % (BS + 2 * k + 1, 20 + k))
    for e in range(20): A('v_mov_b32 v%d, 0' % (SS + e))
    A('s_lshl_b32 s69, s62, 5')
    A('s_add_u32 s69, s69, %d' % STILE)
    A('v_lshl_add_u32 v30, v3, 1, s69')
    A('v_mul_u32_u24 v31, 1040, v2')
    A('v_add_u32 v31, v31, v30')
    A('v_lshrrev_b32 v32, 1, v2')
    A('v_mul_u32_u24 v32, 1040, v32')
    A('v_and_b32 v33, 1, v2')
    A('v_lshl_add_u32 v32, v33, 9, v32')
    A('v_add_u32 v32, v32, v30')
    A('v_lshlrev_b32 v36, 2, v2')
    A('v_xor_b32 v36, v36, v3')
    A('v_lshlrev_b32 v36, 4, v36')
    A('s_lshl_b32 s69, s62, 10')
    A('v_add_u32 v36, s69, v36')
    A('v_lshl_add_u32 v37, v2, 8, v36')
    A('v_add_u32 v37, 16384, v37')
    A('v_lshl_add_u32 v36, v33, 9, v36')
    A('v_lshrrev_b32 v38, 1, v2')
    A('v_lshl_add_u32 v36, v38, 12, v36')
    A('v_add_u32 v38, 40960, v36')
    A('v_add_u32 v39, 40960, v37')
    A('s_lshl_b32 s69, s62, 2')
    A('s_add_u32 s69, s69, %d' % (SYNC + Y_ST))
    A('s_waitcnt vmcnt(0)')
    lds_set(A, 's69', 1, 104, 105)
    A('v_add_u32 v35, %d, v34' % (SYNC + Y_ST))
    lds_wait(A, 35, 33, 'ne', '0', sleep=1)
    for e in range(8): A('ds_read_u16_d16_hi v%d, v31 offset:%d' % (SS + e, e * 128))
    for e in range(8): A('ds_read_u16_d16_hi v%d, v31 offset:%d' % (SS + 8 + e, 4 * 1040 + e * 128))
    for e in range(4): A('ds_read_u16_d16_hi v%d, v32 offset:%d' % (SS + 16 + e, 8 * 1040 + e * 128))
    A('s_mov_b32 s72, %s' % fbits(-LOG2E))
    A('s_mov_b32 s73, %s' % fbits(-LOG2E))
    A('s_setprio 3')
    A('s_waitcnt lgkmcnt(0)')
    stamp(A, c, 9)
    A('s_barrier')
    stamp(A, c, 10)
    P = 104
    parts = [(0, 2), (8, 2), (16, 1)]
    for e0, nq in parts:
        for w in range(4):
            for hf in range(nq):
                if e0 < 16: a, off = (36 if w < 2 else 38), (w & 1) * 20480 + (e0 // 8) * 8192 + hf * 256
                else: a, off = (37 if w < 2 else 39), (w & 1) * 20480
                A('ds_read_b128 %s, v%d offset:%d' % (V(P + 20 * w + e0 + 4 * hf, 4), a, off))
    T = 184; O = 204
    for pi, (e0, nq) in enumerate(parts):
        A('s_waitcnt lgkmcnt(%d)' % [12, 4, 0][pi])
        R = range(e0, e0 + 4 * nq, 2)
        for e in R: A('v_pk_add_f32 %s, %s, %s' % (V(P + e, 2), V(P + e, 2), V(P + 20 + e, 2)))
        for e in R: A('v_pk_add_f32 %s, %s, %s' % (V(P + 40 + e, 2), V(P + 40 + e, 2), V(P + 60 + e, 2)))
        for e in R: A('v_pk_add_f32 %s, %s, %s' % (V(P + e, 2), V(P + e, 2), V(BS + e, 2)))
        for e in R: A('v_pk_add_f32 %s, %s, %s' % (V(P + e, 2), V(P + e, 2), V(P + 40 + e, 2)))
        for e in R: A('v_pk_mul_f32 %s, %s, s[72:73]' % (V(T + e, 2), V(P + e, 2)))
        for e in range(e0, e0 + 4 * nq): A('v_exp_f32 v%d, v%d' % (T + e, T + e))
        for e in R: A('v_pk_mul_f32 %s, %s, %s' % (V(P + e, 2), V(P + e, 2), V(SS + e, 2)))
        for e in R: A('v_pk_add_f32 %s, %s, 1.0 op_sel_hi:[1,0]' % (V(T + e, 2), V(T + e, 2)))
        for e in range(e0, e0 + 4 * nq): A('v_rcp_f32 v%d, v%d' % (T + e, T + e))
        for e in R: A('v_pk_fma_f32 %s, %s, %s, %s' % (V(P + e, 2), V(P + e, 2), V(T + e, 2), V(XS + e, 2)))
        for e in R: A('v_cvt_pk_bf16_f32 v%d, v%d, v%d' % (O + e // 2, P + e, P + e + 1))
        if nq == 2: A('buffer_store_dwordx4 %s, v5, s[52:55], s66 offen offset:%d' % (V(O + e0 // 2, 4), e0 * 8))
        else: A('buffer_store_dwordx2 %s, v4, s[52:55], s66 offen offset:128' % V(O + e0 // 2, 2))
    endpgm(A, c)

def layernorm(A, c):
    A('s_setprio 2')
    A('s_lshl_b32 s62, s38, 2')
    A('s_add_u32 s62, s62, s39')
    A.srd(44, 4, 2048 * 1280)
    A('v_lshrrev_b32 v10, 3, v1')
    A('s_mul_i32 s64, s62, %d' % (64 * 1280))
    A('s_lshl_b32 s65, s3, 8')
    A('s_add_u32 s64, s64, s65')
    A('s_lshl_b32 s66, s3, 14')
    for st in range(2):
        for hf in range(2):
            A('s_add_u32 s65, s64, %d' % (st * 128 + hf * 32 * 1280))
            A('s_add_u32 m0, s66, %d' % (st * 8192 + hf * 4096))
            for i in range(4): A('buffer_load_dwordx4 v%d, s[44:47], s65 offen offset:%d lds' % (4 + i, 1024 * i))
    A('v_bfe_u32 v12, v1, 1, 3')
    A('v_lshlrev_b32 v13, 7, v1')
    A('v_lshl_add_u32 v13, v12, 4, v13')
    A('v_add_u32 v13, s66, v13')
    for q in range(8): A('v_xor_b32 v%d, %d, v13' % (16 + q, q * 16))
    A('v_and_b32 v12, 7, v1')
    A('v_and_b32 v14, 1, v12')
    A('v_lshlrev_b32 v14, 2, v14')
    A('v_xor_b32 v14, v14, v10')
    A('v_lshlrev_b32 v15, 10, v12')
    A('v_lshl_add_u32 v15, v14, 4, v15')
    A('v_add_u32 v15, s66, v15')
    for i in range(4): A('v_xor_b32 v%d, %d, v15' % (24 + i, i * 16))
    A('s_mov_b32 s70, 0x3f803f80')
    for i in range(4): A('v_mov_b32 v%d, 0' % (32 + i))
    for st in range(2):
        A('s_waitcnt vmcnt(%d)' % (8 if st == 0 else 0))
        if st == 1: stamp(A, c, 1)
        for q in range(8): A('ds_read_b128 %s, v%d offset:%d' % (V(40 + 4 * q, 4), 16 + q, st * 8192))
        for q in range(8):
            A('s_waitcnt lgkmcnt(%d)' % (7 - q))
            for e in range(4):
                r = 40 + 4 * q + e
                A('v_dot2_f32_bf16 v%d, v%d, s70, v%d' % (32 + 2 * (e & 1), r, 32 + 2 * (e & 1)))
                A('v_dot2_f32_bf16 v%d, v%d, v%d, v%d' % (33 + 2 * (e & 1), r, r, 33 + 2 * (e & 1)))
    A('v_pk_add_f32 v[32:33], v[32:33], v[34:35]')
    A('s_lshl_b32 s67, s3, 9')
    A('v_lshlrev_b32 v36, 3, v1')
    A('v_add_u32 v37, s67, v36')
    A('v_add_u32 v37, %d, v37' % LN_PART)
    A('ds_write_b64 v37, v[32:33]')
    A('s_lshl_b32 s68, s3, 2')
    A('s_add_u32 s68, s68, %d' % (SYNC + Y_LN))
    lds_set(A, 's68', 1, 38, 39)
    for st in range(2):
        for i in range(8): A('ds_read_b128 %s, v%d offset:%d' % (V(72 + 32 * st + 4 * i, 4), 24 + i // 2, st * 8192 + i * 128))
    A('v_min_u32 v38, 4, v1')
    A('v_lshlrev_b32 v38, 2, v38')
    A('v_add_u32 v38, %d, v38' % (SYNC + Y_LN))
    lds_wait(A, 38, 39, 'ne', '0', sleep=0)
    A('v_add_u32 v38, %d, v36' % LN_PART)
    for w in range(5): A('ds_read_b64 %s, v38 offset:%d' % (V(40 + 2 * w, 2), w * 512))
    A('s_waitcnt lgkmcnt(0)')
    A('v_pk_add_f32 v[40:41], v[40:41], v[42:43]')
    A('v_pk_add_f32 v[44:45], v[44:45], v[46:47]')
    A('v_pk_add_f32 v[40:41], v[40:41], v[48:49]')
    A('v_pk_add_f32 v[40:41], v[40:41], v[44:45]')
    A('v_mul_f32 v40, %s, v40' % fbits(1.0 / 640))
    A('v_mul_f32 v41, %s, v41' % fbits(1.0 / 640))
    A('v_fma_f32 v41, -v40, v40, v41')
    A('v_max_f32 v41, 0, v41')
    A('v_cvt_pk_bf16_f32 v42, v40, v41')
    A('v_lshlrev_b32 v40, 16, v42')
    A('v_and_b32 v41, 0xffff0000, v42')
    A('v_add_f32 v41, %s, v41' % fbits(1e-5))
    A('v_cvt_pk_bf16_f32 v41, v41, v41')
    A('v_lshlrev_b32 v41, 16, v41')
    A('v_sqrt_f32 v41, v41')
    A('v_cvt_pk_bf16_f32 v45, v41, 0')
    A('v_lshlrev_b32 v41, 16, v45')
    A('v_rcp_f32 v46, v41')
    A('v_cvt_pk_bf16_f32 v44, -v40, v41')
    A('v_mul_f32 v47, -v40, v46')
    A('v_add_u32 v37, %d, v37' % (LN_PST - LN_PART))
    A('ds_write_b64 v37, v[46:47]')
    A('s_cmp_lg_u32 s3, 1')
    A('s_cbranch_scc1 L_ln_nopub')
    get_nonce(A, 42, 45)
    A('s_lshl_b32 s68, s62, 9')
    A('s_add_u32 s68, s68, %d' % STAT)
    A('buffer_store_dwordx2 v[44:45], v36, s[40:43], s68 offen sc1')
    A('L_ln_nopub:')
    A('s_setprio 0')
    stamp(A, c, 2)
    A('v_lshlrev_b32 v38, 6, v12')
    A('v_add_u32 v38, s67, v38')
    A('v_add_u32 v38, %d, v38' % LN_PST)
    for k in range(4): A('ds_read_b128 %s, v38 offset:%d' % (V(48 + 4 * k, 4), 16 * k))
    A('v_lshlrev_b32 v39, 15, v10')
    A('v_lshl_add_u32 v39, v12, 4, v39')
    A('s_lshl_b32 s68, s3, 19')
    A('s_lshl_b32 s69, s62, 7')
    A('s_add_u32 s68, s68, s69')
    A('s_waitcnt lgkmcnt(0)')
    for st in range(2):
        for q in range(4):
            t = 136 + 16 * (q & 1)
            o = 168 + 8 * (q & 1)
            for i in range(8):
                A('v_lshlrev_b32 v%d, 16, v%d' % (t + 2 * i, 72 + 32 * st + 4 * i + q))
                A('v_and_b32 v%d, 0xffff0000, v%d' % (t + 2 * i + 1, 72 + 32 * st + 4 * i + q))
            for i in range(8):
                A('v_pk_fma_f32 %s, %s, %s, %s op_sel:[0,0,1] op_sel_hi:[1,0,1]' % (V(t + 2 * i, 2), V(t + 2 * i, 2), V(48 + 2 * i, 2), V(48 + 2 * i, 2)))
            for e in range(2):
                for k in range(4): A('v_cvt_pk_bf16_f32 v%d, v%d, v%d' % (o + 4 * e + k, t + 4 * k + e, t + 4 * k + 2 + e))
                A('s_add_u32 s69, s68, %d' % (XNT + (64 * st + 2 * q + e) * 4096))
                A('buffer_store_dwordx4 %s, v39, s[40:43], s69 offen sc1' % V(o + 4 * e, 4))
    get_nonce(A, 40, 41)
    stamp(A, c, 3)
    A('s_lshl_b32 s68, s3, 5')
    A('s_add_u32 s68, s68, s62')
    A('s_lshl_b32 s68, s68, 2')
    A('s_add_u32 s68, s68, %d' % FXN)
    A('s_waitcnt vmcnt(0)')
    gflag(A, 's68', 40, 41)
    stamp(A, c, 4)

def gen_kernel(c):
    A = Asm()
    SC[0] = '' if c.acq else ' sc1'
    A('s_cmp_ge_u32 s2, 256')
    A('s_cbranch_scc1 L_exit')
    if c.stamp:
        for i in range(12): A('s_mov_b32 s%d, 0' % (78 + 2 * i))
        stamp(A, c, 0)
    A('s_load_dwordx16 s[4:19], s[0:1], 0')
    A('s_load_dwordx16 s[20:35], s[0:1], 64')
    A('s_load_dwordx2 s[36:37], s[0:1], 128')
    A('v_and_b32 v1, 63, v0')
    A('v_lshrrev_b32 v2, 6, v0')
    A('v_lshlrev_b32 v3, 2, v1')
    A('v_readfirstlane_b32 s3, v2')
    A('v_add_u32 v3, %d, v3' % SYNC)
    A('v_mov_b32 v2, 0')
    A('ds_write_b32 v3, v2')
    A('s_and_b32 s38, s2, 7')
    A('s_lshr_b32 s39, s2, 3')
    A('s_max_u32 s61, s39, 4')
    A('s_sub_u32 s61, s61, 4')
    if c.mapP:
        A('s_and_b32 s60, s61, 1')
        A('s_lshr_b32 s61, s61, 1')
        A('s_lshl_b32 s62, s38, 1')
        A('s_add_u32 s60, s60, s62')
        A('s_and_b32 s56, s39, 3')
        A('s_lshl_b32 s62, s38, 2')
        A('s_add_u32 s56, s56, s62')
        A('s_lshr_b32 s57, s39, 2')
    else:
        A('s_and_b32 s60, s61, 3')
        A('s_lshr_b32 s61, s61, 2')
        A('s_lshr_b32 s62, s38, 1')
        A('s_lshl_b32 s63, s62, 2')
        A('s_add_u32 s60, s60, s63')
        A('s_and_b32 s63, s38, 1')
        A('s_mul_i32 s64, s63, 7')
        A('s_add_u32 s61, s61, s64')
        A('s_lshl_b32 s56, s62, 3')
        A('s_and_b32 s64, s39, 7')
        A('s_add_u32 s56, s56, s64')
        A('s_lshl_b32 s57, s63, 2')
        A('s_lshr_b32 s64, s39, 3')
        A('s_add_u32 s57, s57, s64')
    A('s_lshr_b32 s58, s2, 1')
    A('s_mul_i32 s58, s58, 5')
    A('v_lshrrev_b32 v10, 3, v1')
    A('v_lshrrev_b32 v11, 4, v1')
    A('v_and_b32 v12, 7, v1')
    A('v_xor_b32 v12, v12, v11')
    A('v_mul_u32_u24 v10, 1280, v10')
    A('v_lshl_add_u32 v4, v12, 4, v10')
    A('v_xor_b32 v12, 4, v12')
    A('v_lshl_add_u32 v5, v12, 4, v10')
    A('v_add_u32 v6, %d, v4' % (16 * 1280 - 2048))
    A('v_add_u32 v7, %d, v5' % (24 * 1280 - 3072))
    A('v_add_u32 v5, %d, v5' % (8 * 1280 - 1024))
    A('v_and_b32 v12, 15, v1')
    A('v_lshlrev_b32 v13, 2, v11')
    A('v_xor_b32 v12, v12, v13')
    A('v_mul_u32_u24 v10, 3456, v11')
    A('v_lshl_add_u32 v14, v12, 4, v10')
    for i in range(1, 4): A('v_add_u32 v%d, %d, v14' % (14 + i, i * (4 * 3456 - 1024)))
    A('s_waitcnt lgkmcnt(0)')
    A('s_barrier')
    A.srd(40, 36, WS_USED)
    if c.dwg >= 0: stamp(A, c, 0)
    A('s_cmp_gt_u32 s3, 4')
    A('s_cbranch_scc1 L_kwave')
    A('s_cmp_lt_u32 s39, 4')
    A('s_cbranch_scc1 L_helper')
    A('s_cmp_lt_u32 s3, 4')
    A('s_cbranch_scc1 L_gwave')
    loader(A, c)
    loader_wl(A, c)
    stamp(A, c, 2)
    A('s_branch L_conv')
    for l in c.ld_slow: A(l)

    A('L_kwave:')
    A('s_setprio %d' % c.kprio)
    A('s_sub_u32 s62, s3, 5')
    A('s_and_b32 s64, s2, 1')
    A('s_mul_i32 s64, s64, 3')
    A('s_cmp_eq_u32 s62, 2')
    A('s_cselect_b32 s64, 0, s64')
    A('s_add_u32 s63, s58, s64')
    A('s_add_u32 s63, s63, s62')
    A('s_mul_i32 s67, s62, %d' % KG_BUF)
    A('s_add_u32 s67, s67, %d' % KS0)
    A('s_mov_b32 s74, 0')
    kgen_loads(A)
    A.srd(52, 34, 256)
    A('s_cmp_eq_u32 s62, 2')
    A('s_cbranch_scc1 L_k2')
    A('s_cmp_ge_u32 s39, 4')
    A('s_cbranch_scc1 L_kgo')
    colsum(A, c)
    A('s_branch L_kgo')
    A('L_k2:')
    A('v_mov_b32 v12, 0')
    A('s_cmp_lg_u32 s2, 0')
    A('s_cbranch_scc1 L_k2a')
    A('s_memrealtime s[68:69]')
    A('s_waitcnt lgkmcnt(0)')
    A('s_or_b32 s68, s68, 1')
    A('s_mul_i32 s68, s68, 0x9E3779B1')
    A('v_mov_b32 v13, s68')
    A('s_mov_b64 exec, 1')
    A('buffer_store_dword v13, v12, s[52:55], 0 offen offset:252 sc1')
    A('s_mov_b64 exec, -1')
    A('L_k2a:')
    A('s_cmp_ge_u32 s39, 4')
    A('s_cbranch_scc1 L_k2b')
    nonce_loop(A, 12, 13, False)
    A('s_branch L_kgo')
    A('L_k2b:')
    A('s_cmp_ge_u32 s2, 248')
    A('s_cbranch_scc1 L_kgo')
    w2n_issue(A, c)
    A('s_waitcnt vmcnt(10) lgkmcnt(0)')
    A('s_branch L_kgo2')
    A('L_kgo:')
    A('s_waitcnt vmcnt(0) lgkmcnt(0)')
    A('L_kgo2:')
    stamp(A, c, 1)
    if c.nok:
        B = Asm(); kgen(B, c)
        keep = False
        for l in B.l:
            if l.startswith('s_cmp_lg_u32 s62, 2'): keep = True
            if c.nok == 2 and not l.startswith('ds_') and not l.startswith('v_mfma'): A(l)
            elif c.nok == 3 and not l.startswith('v_mfma'): A(l)
            elif keep: A(l)
            if l in ('L_hook1:', 'L_hook2:'): keep = False
        A('s_lshl_b32 s68, s62, 2')
        A('s_add_u32 s68, s68, %d' % (SYNC + Y_KD))
        lds_set(A, 's68', 1, 20, 21)
        A('s_sleep 100')
        A('s_sleep 100')
    else:
        kgen(A, c)
    A('s_mul_i32 s67, s62, %d' % RSZ)
    A('s_add_u32 s67, s67, %d' % REG0)
    A('v_and_b32 v20, 3, v1')
    A('v_lshlrev_b32 v20, 2, v20')
    A('v_add_u32 v20, %d, v20' % (SYNC + Y_KD))
    lds_wait(A, 20, 21, 'ne', '0', sleep=1)
    stamp(A, c, 3)
    kcopies(A, c)
    A('s_lshl_b32 s68, s62, 2')
    A('s_add_u32 s68, s68, %d' % (SYNC + Y_CV))
    lds_set(A, 's68', 1, 20, 21)
    stamp(A, c, 4)
    A('L_conv:')
    conv_and_finish(A, c)

    A('L_helper:')
    layernorm(A, c)
    A('s_cmp_lg_u32 s3, 4')
    A('s_cbranch_scc1 L_helper_g')
    records_addr(A, c)
    A('v_and_b32 v20, 3, v1')
    A('v_lshlrev_b32 v20, 2, v20')
    A('v_add_u32 v20, %d, v20' % (SYNC + Y_GPROG))
    b1_load(A)
    records_batch(A, c)
    A('s_branch L_ld_rec')
    A('L_helper_g:')
    g_common_setup(A, c)
    lds_set(A, 's75', 9, 100, 101)
    A('v_mov_b32 v100, %d' % (SYNC + Y_REC))
    lds_wait(A, 100, 101, 'ne', '0')
    if c.acq == 1: A('buffer_inv sc1')
    A('s_setprio %d' % c.gprio)
    A('s_branch L_g_nogelu')

    A('L_gwave:')
    g_common_setup(A, c)
    gemm1(A, c)
    g_post(A, c)
    A('L_exit:')
    A('s_endpgm')
    return A.l

def generate(c):
    hdr = open('cdna_kernels/%s.s.ref' % NAME).read().split('; Override launch')[0]
    t = hdr
    kn = NAME + '_kernel'
    if c.dwg >= 0: t += '; @launch kernel=%s grid=(256,1,1) block=(512,1,1) lds=%d\n' % (kn, LDS_TOT)
    else: t += '; @launch grid=(256,1,1) block=(512,1,1) lds=%d\n' % LDS_TOT
    t += '.amdgcn_target "amdgcn-amd-amdhsa--gfx950"\n'
    t += kernel_text(kn, gen_kernel(c), 256)
    t += '.section .rodata,"a"\n'
    t += kd_text(kn, 256, 102)
    return t

if __name__ == '__main__':
    c = Cfg()
    out = sys.argv[1] if len(sys.argv) > 1 else 'cdna_kernels/%s.s' % NAME
    for a in sys.argv[2:]:
        k, v = a.split('=')
        assert hasattr(c, k), k
        setattr(c, k, int(v))
    open(out, 'w').write(generate(c))
    print('wrote', out, 'lds', LDS_TOT)
```

```python
import sys
sys.path.insert(0,'work')
from gpulib import *
import gen2
for f in sys.argv[1:]:
    asm = open(f).read()
    co = build(asm, gen2.NAME+'_kernel', 17, 'chk')
    l = launch_list_of(asm, True)
    print(f, CL.address_register_problem(co, gen2.NAME+'_kernel', None if l is None else CL.launch_list_kernel_names(l)))
    print(subprocess.run('llvm-readelf -S %s | grep -i text' % co, shell=True, capture_output=True, text=True).stdout.strip())
```
